```python
import torch

def _softmax(x, axis=-1):
    return torch.softmax(x, dim=axis)
def _gelu(x):
    return torch.nn.functional.gelu(x, approximate="tanh")
def _silu(x):
    return torch.nn.functional.silu(x)
def _sigmoid(x):
    return torch.sigmoid(x)
def _layernorm(x, axis=-1, eps=1e-5):
    m = x.mean(dim=axis, keepdim=True)
    v = x.var(dim=axis, keepdim=True, unbiased=False)
    return (x - m) / torch.sqrt(v + eps)
def _scatter_add(tgt, idx, src, axis=0):
    return tgt.clone().index_add_(axis, idx, src)
def _segment_sum(src, seg, n):
    out = torch.zeros((n,) + src.shape[1:], dtype=src.dtype)
    return out.index_add_(0, seg, src)
def _pad(x, pw):
    flat = tuple(v for pair in reversed(pw) for v in pair)
    return torch.nn.functional.pad(x, flat)

kernel_name = 'gated_mix__spectral_gfnet__spectral_gfnet__prompt'

def setup_inputs():

    _w = (lambda a: (lambda t: t.to(torch.bfloat16) if t.is_floating_point() else t)(torch.as_tensor(a)))
    def _A_setup():
        B, S, D = 1, 2048, 1024
        Df = D // 2 + 1
        return {
            "x": _w((lambda *s: torch.randn(*s, dtype=torch.bfloat16) * 0.05)(B, S, D)),
            "w_r": _w((lambda *s: torch.randn(*s, dtype=torch.bfloat16) * 0.05)(S, Df) * 0.02),
            "w_i": _w((lambda *s: torch.randn(*s, dtype=torch.bfloat16) * 0.05)(S, Df) * 0.02),
        }
    _A_in = _A_setup()

    def _B_setup():
        B, S, D = 1, 2048, 1024
        Df = D // 2 + 1
        return {
            "x": _w((lambda *s: torch.randn(*s, dtype=torch.bfloat16) * 0.05)(B, S, D)),
            "w_r": _w((lambda *s: torch.randn(*s, dtype=torch.bfloat16) * 0.05)(S, Df) * 0.02),
            "w_i": _w((lambda *s: torch.randn(*s, dtype=torch.bfloat16) * 0.05)(S, Df) * 0.02),
        }
    _B_in = _B_setup()

    return {
        "A_x": _A_in["x"],
        "A_w_r": _A_in["w_r"],
        "A_w_i": _A_in["w_i"],
        "B_x": _B_in["x"],
        "B_w_r": _B_in["w_r"],
        "B_w_i": _B_in["w_i"],
        "gate_w": _w((lambda *s: torch.randn(*s, dtype=torch.bfloat16) * 0.05)(1024) * 16.0),
    }

def reference(A_x, A_w_r, A_w_i, B_x, B_w_r, B_w_i, gate_w):
    def _A_ref(x, w_r, w_i):
        B, S, D = x.shape
        X = (lambda x, axes=(-2,-1): torch.fft.rfft2(x.float(), dim=axes))(x, axes=(-2, -1))
        W = w_r + 1j * w_i
        X = X * W
        y = (lambda x, s, axes=(-2,-1): torch.fft.irfft2(x, s=s, dim=axes).to(torch.bfloat16))(X, (S, D), axes=(-2, -1))
        return y

    def _B_ref(x, w_r, w_i):
        B, S, D = x.shape
        X = (lambda x, axes=(-2,-1): torch.fft.rfft2(x.float(), dim=axes))(x, axes=(-2, -1))
        W = w_r + 1j * w_i
        X = X * W
        y = (lambda x, s, axes=(-2,-1): torch.fft.irfft2(x, s=s, dim=axes).to(torch.bfloat16))(X, (S, D), axes=(-2, -1))
        return y

    x = A_x
    g = _sigmoid((x * gate_w).sum(-1, keepdims=True))
    a = _A_ref(x, A_w_r, A_w_i)
    b = _B_ref(x, B_w_r, B_w_i)
    return g * a + (1 - g) * b
```

```python
import re, struct, math

def f32bits(x):
    return struct.unpack('<I', struct.pack('<f', x))[0]
def flit(x):
    return '0x%08x' % f32bits(x)

_reg_re = re.compile(r'^(-?)(\|?)([vsa])(?:(\d+)|\[(\d+):(\d+)\])(\|?)$')

def parse_reg(tok):
    tok = tok.strip()
    if tok.startswith('abs(') or tok.startswith('-abs('):
        tok = tok[tok.index('(')+1:-1]
    if tok in ('vcc',): return [('s', 106), ('s', 107)]
    if tok == 'vcc_lo': return [('s', 106)]
    if tok == 'vcc_hi': return [('s', 107)]
    if tok == 'exec': return [('s', 126), ('s', 127)]
    if tok == 'exec_lo': return [('s', 126)]
    if tok == 'exec_hi': return [('s', 127)]
    if tok == 'm0': return [('s', 124)]
    m = _reg_re.match(tok)
    if not m: return []
    k = m.group(3)
    if m.group(4) is not None: return [(k, int(m.group(4)))]
    return [(k, i) for i in range(int(m.group(5)), int(m.group(6))+1)]

TRANS = ('v_exp_f32', 'v_log_f32', 'v_rcp_f32', 'v_rsq_f32', 'v_sqrt_f32', 'v_sin_f32', 'v_cos_f32')

class Ins:
    def __init__(self, text):
        self.text = text
        t = text.split(';')[0].strip()
        parts = t.split(None, 1)
        self.op = parts[0]
        rest = parts[1] if len(parts) > 1 else ''
        ops = []; cur = ''; depth = 0
        for ch in rest:
            if ch in '[(': depth += 1
            if ch in '])': depth -= 1
            if ch == ',' and depth == 0:
                ops.append(cur.strip()); cur = ''
            else: cur += ch
        if cur.strip(): ops.append(cur.strip())
        mods = []
        if ops:
            sp = ops[-1].split()
            ops[-1] = sp[0]; mods = sp[1:]
        self.ops = ops; self.mods = mods
        op = self.op
        self.is_mfma = op.startswith('v_mfma')
        self.is_valu = op.startswith('v_') and not self.is_mfma
        self.is_trans = any(op.startswith(x) for x in TRANS)
        self.is_dot = op.startswith('v_dot')
        self.is_vmem = op.startswith(('buffer_', 'global_', 'flat_'))
        self.is_ds = op.startswith('ds_')
        self.is_salu = op.startswith('s_')
        self.is_dpp = any(m.startswith(('row_', 'quad_perm', 'wave_')) for m in mods) or op.endswith('_dpp')
        self.is_perml = op.startswith('v_permlane')
        self.is_rdlane = op.startswith(('v_readlane', 'v_readfirstlane', 'v_writelane'))
        self.lds_dma = self.is_vmem and ('lds' in mods or 'load_lds' in op)
        R = []; W = []
        P = [parse_reg(o) for o in ops]
        self.srcC = []; self.srcAB = []
        if self.is_mfma:
            W = P[0]; self.srcAB = P[1] + P[2]; self.srcC = P[3]; R = self.srcAB + self.srcC
            self.passes = 8 if '32x32' in op else 4
        elif self.is_valu:
            if op.startswith('v_cmp'):
                W = P[0]; R = sum(P[1:], [])
                if op.startswith('v_cmpx'): W = W + parse_reg('exec')
            elif self.is_perml or op.startswith('v_swap'):
                W = P[0] + P[1]; R = P[0] + P[1]
            elif op.startswith(('v_add_co', 'v_sub_co', 'v_addc_co', 'v_subb_co', 'v_subrev_co')):
                W = P[0] + P[1]; R = sum(P[2:], [])
            else:
                W = P[0]; R = sum(P[1:], [])
                if op.startswith(('v_fmac', 'v_dot2c', 'v_pk_fmac', 'v_writelane')) or self.is_dpp:
                    R = R + P[0]
                if op.startswith('v_cndmask') and len(ops) == 3: R = R + parse_reg('vcc')
        elif self.is_vmem:
            if op in ('buffer_wbl2', 'buffer_inv'): pass
            elif self.lds_dma:
                R = sum(P, []) + parse_reg('m0')
            elif 'store' in op or ('atomic' in op and 'sc0' not in mods):
                R = sum(P, [])
            else:
                W = P[0]; R = sum(P[1:], [])
                if 'd16' in op or 'atomic' in op: R = R + P[0]
        elif self.is_ds:
            if op.startswith(('ds_write', 'ds_add', 'ds_store')) :
                R = sum(P, [])
            else:
                W = P[0]; R = sum(P[1:], [])
        elif self.is_salu:
            if op.startswith(('s_cmp', 's_cbranch', 's_branch', 's_waitcnt', 's_barrier', 's_nop', 's_endpgm', 's_setprio', 's_sleep', 's_bitcmp')):
                R = sum(P, [])
            else:
                W = P[0] if P else []; R = sum(P[1:], [])
                if 'saveexec' in op: W = W + parse_reg('exec'); R = R + parse_reg('exec')
        self.R = set(R); self.W = set(W)
        self.wide_store = self.is_vmem and 'store' in op and ('x3' in op or 'x4' in op)
        self.store_data = set()
        if self.wide_store:
            self.store_data = set(P[0] if op.startswith('buffer') else P[1])
        self.states = 1
        if op == 's_nop': self.states = int(ops[0], 0) + 1

def required(prev, cur):
    need = 0
    pv = {r for r in prev.W if r[0] in 'va'}
    ps = {r for r in prev.W if r[0] == 's'}
    if prev.is_valu:
        if cur.is_mfma and pv & cur.R: need = max(need, 2)
        if prev.is_trans and cur.is_valu and not cur.is_trans and pv & cur.R: need = max(need, 1)
        if prev.is_trans and (cur.is_vmem or cur.is_ds) and pv & cur.R: need = max(need, 1)
        if cur.is_dpp and pv & cur.R: need = max(need, 2)
        if cur.is_perml and pv & cur.R: need = max(need, 2)
        if cur.is_rdlane and pv & cur.R: need = max(need, 1)
        if ps:
            if cur.is_valu and ps & cur.R: need = max(need, 4 if cur.is_rdlane else 2)
            if cur.is_vmem and ps & cur.R: need = max(need, 5)
            if cur.is_salu and ps & cur.R: need = max(need, 4)
            if cur.is_mfma and ('s', 126) in ps: need = max(need, 4)
            if ('s', 126) in ps and cur.is_dpp: need = max(need, 5)
            if ('s', 126) in ps and (cur.is_rdlane or cur.is_perml): need = max(need, 4)
        if prev.is_dot and (pv & (cur.R | cur.W)):
            if not (cur.op == prev.op and not (pv & set(sum([parse_reg(o) for o in cur.ops[1:3]], [])))):
                need = max(need, 3)
        if any(m.startswith('op_sel') or m.startswith('dst_sel') for m in prev.mods) and not prev.op.startswith('v_pk') and cur.is_valu and pv & (cur.R | cur.W):
            need = max(need, 1)
    if prev.is_mfma:
        p = prev.passes
        n_rw = {4: 8, 8: 12}[p]; n_ov = {4: 6, 8: 10}[p]; n_war = {4: 3, 8: 7}[p]
        if cur.is_mfma:
            if pv & set(cur.srcAB): need = max(need, n_rw)
            if pv & set(cur.srcC):
                if not (set(cur.srcC) == pv and cur.passes == p): need = max(need, n_ov)
            elif pv & cur.W: need = max(need, n_rw)
        else:
            if pv & (cur.R | cur.W): need = max(need, n_rw)
            if cur.is_valu and set(prev.srcC) & cur.W: need = max(need, n_war)
    if prev.wide_store and not cur.is_salu and prev.store_data & cur.W: need = max(need, 2)
    if prev.is_salu and ('s', 124) in prev.W and cur.lds_dma: need = max(need, 1)
    return need

class Asm:
    def __init__(self):
        self.out = []
        self.hist = []
        self.nops = 0
        self.count = 0
    def raw(self, text):
        self.out.append(text)
    def comment(self, t): self.out.append('    ; ' + t)
    def label(self, name):
        self.flush()
        self.out.append(name + ':')
    def flush(self, n=12):
        need = 0; dist = 0
        for p in reversed(self.hist):
            w = 0
            if p.is_mfma: w = {4: 8, 8: 12}[p.passes]
            elif p.is_valu: w = 5 if any(r[0] == 's' for r in p.W) else (3 if p.is_dot else 2)
            elif p.wide_store: w = 2
            elif p.is_salu and ('s', 124) in p.W: w = 1
            need = max(need, w - dist)
            dist += p.states
            if dist > 12: break
        if need > 0: self._nop(need)
        self.hist = []
    def _nop(self, n):
        while n > 0:
            k = min(n, 16)
            i = Ins('s_nop %d' % (k-1)); self.hist.append(i); self.out.append('    s_nop %d' % (k-1)); n -= k
            self.nops += 1
    def __call__(self, text):
        for line in text.strip().split('\n'):
            line = line.strip()
            if not line or line.startswith(';'): continue
            cur = Ins(line)
            need = 0; dist = 0
            for p in reversed(self.hist):
                r = required(p, cur)
                need = max(need, r - dist)
                dist += p.states
                if dist > 12: break
            if need > 0: self._nop(need)
            self.hist.append(cur)
            if len(self.hist) > 40: self.hist = self.hist[-20:]
            self.out.append('    ' + line)
            self.count += 1
            if cur.op.startswith(('s_cbranch', 's_branch')):
                pass
    def text(self): return '\n'.join(self.out) + '\n'

class Regs:
    def __init__(self, start=1): self.n = start; self.hi = start
    def alloc(self, cnt=1, align=1):
        self.n = (self.n + align - 1)//align*align
        b = self.n; self.n += cnt; self.hi = max(self.hi, self.n); return b
def v(b, n=1): return 'v%d' % b if n == 1 else 'v[%d:%d]' % (b, b+n-1)
def s(b, n=1): return 's%d' % b if n == 1 else 's[%d:%d]' % (b, b+n-1)
```

```python
import sys, math
from asmlib import *

NAME = 'gated_mix__spectral_gfnet__spectral_gfnet__prompt'
WS_T1 = 0
T1_BYTES = 257*16384
WS_V = 0x800000
VROW = 4224
VN = 8*VROW
V_BYTES = 256*VN
WS_G = 0x1800000
G_BYTES = 2048*4
X_BYTES = 2048*1024*2
W_BYTES = 2048*513*2
SGN = 0x80008000

def srd(a, d, base, off, size):
    if off:
        a(f's_add_u32 s{d}, s{base}, {off:#x}')
        a(f's_addc_u32 s{d+1}, s{base+1}, 0')
    else:
        a(f's_mov_b32 s{d}, s{base}')
        a(f's_mov_b32 s{d+1}, s{base+1}')
    a(f's_mov_b32 s{d+2}, {size:#x}')
    a(f's_mov_b32 s{d+3}, 0x00020000')

def branch(a, ins):
    a.flush(); a(ins)

class Core:
    def __init__(self, R):
        self.FA = [[R.alloc(4, 4) for ks in range(2)] for T in range(2)]
        self.FB = [[R.alloc(4, 4) for ks in range(2)] for T in range(2)]
        self.twc = R.alloc(8, 2); self.tws = R.alloc(8, 2)
        self.d1 = [[R.alloc(4, 4) for ks in range(2)] for mt in range(2)]
        self.a1 = [[R.alloc(4, 4) for T in range(2)] for mt in range(2)]
        self.d2 = [R.alloc(4, 4) for ks in range(2)]
        self.a2 = [[R.alloc(4, 4) for T in range(2)] for nt in range(2)]
        self.t = R.alloc(8, 2)
    def consts(self, a, vi, vq, shf):
        t = self.t
        o, fo, f4q, ang, c, sn, m1 = t, t+1, t+2, t+3, t+4, t+5, t+6
        a(f'v_lshl_add_u32 v{o}, s{shf}, 4, v{vi}')
        a(f'v_cvt_f32_u32 v{fo}, v{o}')
        a(f'v_lshlrev_b32 v{f4q}, 2, v{vq}')
        a(f'v_cvt_f32_u32 v{f4q}, v{f4q}')
        a(f'v_and_b32 v{m1}, 1, v{vi}')
        a(f'v_mul_u32_u24 v{m1}, 0x8000, v{m1}')
        a(f'v_lshl_or_b32 v{m1}, v{m1}, 16, v{m1}')
        a(f'v_mul_f32 v{fo}, {flit(1/32)}, v{fo}')
        a(f'v_mul_f32 v{f4q}, v{f4q}, v{fo}')
        m2 = t+7
        a(f'v_xor_b32 v{m2}, {SGN:#x}, v{m1}')
        for jj in range(4):
            if jj == 0: src = f4q
            else:
                a(f'v_fmamk_f32 v{ang}, v{fo}, {flit(float(jj))}, v{f4q}'); src = ang
            a(f'v_cos_f32 v{c}, v{src}')
            a(f'v_sin_f32 v{sn}, v{src}')
            a(f'v_cvt_pk_bf16_f32 v{self.FA[0][0]+jj}, v{c}, v{sn}')
            a(f'v_cvt_pk_bf16_f32 v{self.FA[1][0]+jj}, -v{sn}, v{c}')
            for T in range(2):
                b = self.FA[T][0]+jj
                a(f'v_xor_b32 v{self.FA[T][1]+jj}, v{m1}, v{b}')
                if jj & 1:
                    a(f'v_xor_b32 v{self.FB[T][0]+jj}, {SGN:#x}, v{b}')
                    a(f'v_xor_b32 v{self.FB[T][1]+jj}, v{m2}, v{b}')
                else:
                    a(f'v_mov_b32 v{self.FB[T][0]+jj}, v{b}')
                    a(f'v_xor_b32 v{self.FB[T][1]+jj}, v{m1}, v{b}')
        a(f'v_mul_f32 v{fo}, {flit(1/32)}, v{fo}')
        a(f'v_mul_f32 v{f4q}, {flit(1/32)}, v{f4q}')
        for mt in range(2):
            for r in range(4):
                e = 16*mt + r
                if e == 0: src = f4q
                else:
                    a(f'v_fmamk_f32 v{ang}, v{fo}, {flit(float(e))}, v{f4q}'); src = ang
                a(f'v_cos_f32 v{self.twc+4*mt+r}, v{src}')
                a(f'v_sin_f32 v{self.tws+4*mt+r}, v{src}')
    def stage1(self, a, waits=None):
        for mt in range(2):
            for ks in range(2):
                if waits: a(waits[(mt, ks)])
                for T in range(2):
                    c = '0' if ks == 0 else v(self.a1[mt][T], 4)
                    a(f'v_mfma_f32_16x16x32_bf16 {v(self.a1[mt][T],4)}, {v(self.d1[mt][ks],4)}, {v(self.FA[T][ks],4)}, {c}')
    def twiddle(self, a, mt):
        t = self.t
        yr, yi = self.a1[mt]
        for r in range(4):
            c = self.twc+4*mt+r; sn = self.tws+4*mt+r
            t0 = t + 2*(r & 1); t1 = t0+1
            a(f'v_mul_f32 v{t0}, v{yi+r}, v{sn}')
            a(f'v_mul_f32 v{t1}, v{yr+r}, v{sn}')
            a(f'v_fma_f32 v{t0}, v{yr+r}, v{c}, v{t0}')
            a(f'v_fma_f32 v{t1}, v{yi+r}, v{c}, -v{t1}')
            a(f'v_cvt_pk_bf16_f32 v{self.d2[mt]+r}, v{t0}, v{t1}')
    def stage2(self, a, ks):
        for nt, F in enumerate((self.FA, self.FB)):
            for T in range(2):
                c = '0' if ks == 0 else v(self.a2[nt][T], 4)
                a(f'v_mfma_f32_16x16x32_bf16 {v(self.a2[nt][T],4)}, {v(self.d2[ks],4)}, {v(F[T][ks],4)}, {c}')

def header(a, name):
    a.raw(f'.globl {name}\n.p2align 8\n.type {name},@function\n{name}:')

def descriptor(name, nv, ns=64):
    nv8 = (nv + 7)//8*8
    return f'''.p2align 6
.amdhsa_kernel {name}
  .amdhsa_next_free_vgpr {nv8}
  .amdhsa_next_free_sgpr {ns}
  .amdhsa_accum_offset {nv8}
  .amdhsa_group_segment_fixed_size 0
  .amdhsa_kernarg_size 80
  .amdhsa_user_sgpr_count 2
  .amdhsa_user_sgpr_kernarg_segment_ptr 1
  .amdhsa_system_sgpr_workgroup_id_x 1
.end_amdhsa_kernel
'''

K1_ZB = 16384
ZP = 4496
K1_LDS = K1_ZB + 4*ZP

def k1():
    a = Asm(); name = 'gm_rowfft_kernel'
    header(a, name)
    R = Regs(1)
    lane, vi, vq = R.alloc(), R.alloc(), R.alloc()
    a('s_cmp_ge_u32 s2, 256')
    a('s_cbranch_scc1 K1_end')
    a('s_load_dwordx2 s[4:5], s[0:1], 0')
    a('s_load_dwordx2 s[6:7], s[0:1], 48')
    a('s_load_dwordx2 s[8:9], s[0:1], 72')
    sw, shf, sp, snp = 28, 29, 30, 31
    a(f'v_lshrrev_b32 v{lane}, 6, v0')
    a(f'v_readfirstlane_b32 s{sw}, v{lane}')
    a(f'v_and_b32 v{lane}, 63, v0')
    a(f'v_and_b32 v{vi}, 15, v0')
    a(f'v_bfe_u32 v{vq}, v0, 4, 2')
    a(f's_and_b32 s{shf}, s{sw}, 1')
    a(f's_lshr_b32 s{sp}, s{sw}, 1')
    a(f's_and_b32 s{snp}, s2, 7')
    a(f's_lshl_b32 s{snp}, s{snp}, 5')
    a(f's_lshr_b32 s3, s2, 3')
    a(f's_add_u32 s{snp}, s{snp}, s3')
    vx, vt = R.alloc(), R.alloc()
    a(f'v_lshlrev_b32 v{vx}, 4, v{lane}')
    a(f'v_and_b32 v{vt}, 16, v{lane}')
    a(f'v_lshlrev_b32 v{vt}, 3, v{vt}')
    a(f'v_xor_b32 v{vx}, v{vx}, v{vt}')
    a(f's_lshl_b32 s32, s{shf}, 5')
    a(f'v_xor_b32 v{vx}, s32, v{vx}')
    a(f's_lshl_b32 s33, s{shf}, 2')
    a(f's_add_u32 s33, s33, s{sp}')
    a(f's_lshl_b32 s34, s33, 8')
    a(f's_add_u32 s34, s34, s{snp}')
    a(f's_lshl_b32 s35, s34, 11')
    a(f's_lshl_b32 s36, s{sw}, 11')
    a(f's_mov_b32 m0, s36')
    vg = R.alloc()
    a(f'v_lshlrev_b32 v{vg}, 5, v{lane}')
    a(f'v_and_b32 v{vt}, 8, v{lane}')
    a(f'v_lshlrev_b32 v{vt}, 4, v{vt}')
    a(f'v_xor_b32 v{vg}, v{vg}, v{vt}')
    a(f'v_xor_b32 v{vg}, s32, v{vg}')
    a('s_waitcnt lgkmcnt(0)')
    srd(a, 12, 4, 0, X_BYTES)
    a(f'buffer_load_dwordx4 v{vx}, s[12:15], s35 offen lds')
    a(f'buffer_load_dwordx4 v{vx}, s[12:15], s35 offen offset:1024 lds')
    srd(a, 16, 6, 0, 2048)
    gwr = R.alloc(8, 4)
    a(f'buffer_load_dwordx4 {v(gwr,4)}, v{vg}, s[16:19], 0 offen')
    a(f'buffer_load_dwordx4 {v(gwr+4,4)}, v{vg}, s[16:19], 0 offen offset:16')
    srd(a, 20, 8, WS_T1, T1_BYTES)
    srd(a, 24, 8, WS_G, G_BYTES)
    C = Core(R)
    C.consts(a, vi, vq, shf)
    ar = [[R.alloc() for mt in range(2)] for t in range(2)]
    b = ar[0][0]
    t0, t1 = C.t, C.t+1
    a(f'v_and_b32 v{b}, 3, v{vi}')
    a(f'v_lshlrev_b32 v{b}, 3, v{b}')
    a(f'v_bfe_u32 v{t0}, v{vi}, 2, 1')
    a(f'v_mul_u32_u24 v{t0}, {2048+32}, v{t0}')
    a(f'v_add_u32 v{b}, v{b}, v{t0}')
    a(f'v_bfe_u32 v{t0}, v{vi}, 3, 1')
    a(f'v_lshl_add_u32 v{b}, v{t0}, 6, v{b}')
    a(f'v_lshl_add_u32 v{b}, v{vq}, 8, v{b}')
    a(f'v_and_b32 v{t0}, 1, v{vq}')
    a(f'v_lshl_add_u32 v{b}, v{t0}, 7, v{b}')
    a(f's_lshl_b32 s37, s{sp}, 12')
    a(f'v_add_u32 v{b}, s37, v{b}')
    a(f'v_xor_b32 v{ar[0][1]}, 32, v{b}')
    a(f'v_xor_b32 v{ar[1][0]}, 0x80, v{b}')
    a(f'v_xor_b32 v{ar[1][1]}, 0xa0, v{b}')
    af, amb, am0 = R.alloc(), R.alloc(), R.alloc()
    a(f's_mul_i32 s38, s{sp}, {ZP}')
    a(f's_add_u32 s38, s38, {K1_ZB}')
    a(f's_lshl_b32 s39, s{shf}, 7')
    a(f'v_lshlrev_b32 v{t0}, 5, v{vq}')
    a(f'v_add_u32 v{t0}, s39, v{t0}')
    a(f'v_mul_u32_u24 v{t1}, 264, v{vi}')
    a(f'v_add3_u32 v{af}, v{t0}, v{t1}, s38')
    a(f's_add_u32 s40, s38, {264*16 - 4 - 24}')
    a(f'v_add_u32 v{t1}, v{t0}, v{t1}')
    a(f'v_sub_u32 v{amb}, s40, v{t1}')
    a(f'v_cmp_eq_u32 vcc, 0, v{t0}')
    a(f'v_cndmask_b32 v{t1}, 24, 32, vcc')
    a(f'v_add_u32 v{am0}, v{amb}, v{t1}')
    azr, ast, asp = R.alloc(), R.alloc(), R.alloc()
    a(f'v_mul_u32_u24 v{azr}, {ZP}, v{vq}')
    a(f'v_add_u32 v{asp}, {K1_ZB + 264*16}, v{azr}')
    a(f'v_lshrrev_b32 v{t0}, 3, v{vi}')
    a(f'v_mul_u32_u24 v{t0}, 264, v{t0}')
    a(f'v_and_b32 v{t1}, 7, v{vi}')
    a(f'v_lshl_add_u32 v{t0}, v{t1}, 5, v{t0}')
    a(f's_mul_i32 s41, s{sw}, 528')
    a(f's_add_u32 s41, s41, {K1_ZB}')
    a(f'v_add3_u32 v{azr}, v{azr}, v{t0}, s41')
    a(f'v_lshrrev_b32 v{t0}, 2, v{vi}')
    a(f'v_lshlrev_b32 v{ast}, 17, v{t0}')
    a(f'v_lshl_add_u32 v{ast}, v{vq}, 15, v{ast}')
    a(f'v_and_b32 v{t0}, 3, v{vi}')
    a(f'v_lshl_add_u32 v{ast}, v{t0}, 4, v{ast}')
    a(f's_lshl_b32 s42, s{sw}, 19')
    a(f's_lshl_b32 s43, s{snp}, 6')
    a(f's_add_u32 s42, s42, s43')
    a(f's_add_u32 s44, s42, 16384')
    a(f's_add_u32 s45, s43, {256*16384}')
    Rf = R.alloc(2, 2)
    t2, t3, t4 = C.t+2, C.t+3, C.t+4
    a(f'v_lshrrev_b32 v{t0}, 1, v{vi}')
    a(f'v_lshl_add_u32 v{t1}, v{vq}, 8, s{snp}')
    a(f'v_mul_u32_u24 v{t1}, v{t1}, v{t0}')
    a(f'v_and_b32 v{t2}, 1, v{vi}')
    a(f'v_lshl_add_u32 v{t1}, v{t2}, 9, v{t1}')
    a(f'v_and_b32 v{t2}, 1, v{t0}')
    a(f'v_lshlrev_b32 v{t2}, 9, v{t2}')
    a(f'v_sub_u32 v{t2}, 256, v{t2}')
    a(f'v_add_u32 v{t3}, v{t1}, v{t2}')
    a(f'v_sub_u32 v{t4}, v{t1}, v{t2}')
    a(f'v_cvt_f32_i32 v{t3}, v{t3}')
    a(f'v_cvt_f32_i32 v{t4}, v{t4}')
    a(f'v_mul_f32 v{t3}, {flit(1/2048)}, v{t3}')
    a(f'v_mul_f32 v{t4}, {flit(1/2048)}, v{t4}')
    a(f'v_cos_f32 v{t0}, v{t3}')
    a(f'v_sin_f32 v{t1}, v{t3}')
    a(f'v_cos_f32 v{t2}, v{t4}')
    a(f'v_sin_f32 v{t3}, v{t4}')
    a(f'v_cvt_pk_bf16_f32 v{Rf}, v{t0}, v{t1}')
    a(f'v_cvt_pk_bf16_f32 v{Rf+1}, v{t2}, -v{t3}')
    a('s_waitcnt vmcnt(0)')
    a('s_barrier')
    for mt in range(2):
        for ks in range(2):
            for t in range(2):
                a(f'ds_read_b64_tr_b16 {v(C.d1[mt][ks]+2*t,2)}, v{ar[t][mt]} offset:{1024*ks}')
    C.stage1(a, {(0,0): 's_waitcnt lgkmcnt(6)', (0,1): 's_waitcnt lgkmcnt(4)', (1,0): 's_waitcnt lgkmcnt(2)', (1,1): 's_waitcnt lgkmcnt(0)'})
    C.twiddle(a, 0); C.stage2(a, 0); C.twiddle(a, 1); C.stage2(a, 1)
    zd = [C.d1[0][0], C.d1[0][1]]
    for nt in range(2):
        for r in range(4):
            a(f'v_cvt_pk_bf16_f32 v{zd[nt]+r}, v{C.a2[nt][0]+r}, v{C.a2[nt][1]+r}')
    a(f's_cmp_eq_u32 s{shf}, 1')
    branch(a, 's_cbranch_scc1 K1_hf1')
    def fwd(z):
        a(f'ds_write2_b32 v{af}, v{z}, v{z+1} offset0:0 offset1:2')
        a(f'ds_write2_b32 v{af}, v{z+2}, v{z+3} offset0:4 offset1:6')
    fwd(zd[0])
    z = zd[1]
    a(f'ds_write_b32 v{am0}, v{z}')
    a(f'ds_write_b32 v{amb}, v{z+1} offset:16')
    a(f'ds_write2_b32 v{amb}, v{z+2}, v{z+3} offset0:2 offset1:0')
    a('s_mov_b64 exec, 1')
    a(f'ds_write_b32 v{af}, v{zd[0]} offset:4')
    a(f'ds_write_b32 v{af}, v{zd[1]} offset:{264*16}')
    a('s_mov_b64 exec, -1')
    branch(a, 's_branch K1_join')
    a.label('K1_hf1')
    fwd(zd[1])
    z = zd[0]
    a(f'ds_write2_b32 v{amb}, v{z}, v{z+1} offset0:6 offset1:4')
    a(f'ds_write2_b32 v{amb}, v{z+2}, v{z+3} offset0:2 offset1:0')
    a.label('K1_join')
    a('s_waitcnt lgkmcnt(0)')
    a('s_barrier')
    zb = C.d1[1][0]
    assert C.d1[1][1] == zb+4
    for t in range(4):
        a(f'ds_read_b64 {v(zb+2*t,2)}, v{azr} offset:{8*t}')
    zs = C.d2[0]
    a(f'ds_read_b64 {v(zs,2)}, v{asp}')
    gx = R.alloc(8, 4)
    a(f'v_lshlrev_b32 v{vt}, 5, v{lane}')
    a(f'v_add_u32 v{vt}, s36, v{vt}')
    a(f'ds_read_b128 {v(gx,4)}, v{vt}')
    a(f'ds_read_b128 {v(gx+4,4)}, v{vt} offset:16')
    acc = [C.a1[0][0], C.a1[0][1], C.a1[1][0], C.a1[1][1]]
    for t in range(4):
        a(f's_waitcnt lgkmcnt({6-t})')
        a(f'v_mfma_f32_16x16x16_bf16 {v(acc[t],4)}, {v(Rf,2)}, {v(zb+2*t,2)}, 0')
    a(f's_waitcnt lgkmcnt(2)')
    accs = C.a2[0][0]
    a(f'v_mfma_f32_16x16x16_bf16 {v(accs,4)}, {v(Rf,2)}, {v(zs,2)}, 0')
    o0, o1 = C.d1[0][0], C.d1[0][1]
    for t in range(4):
        a(f'v_cvt_pk_bf16_f32 v{o0+t}, v{acc[t]}, v{acc[t]+1}')
        a(f'v_cvt_pk_bf16_f32 v{o1+t}, v{acc[t]+2}, v{acc[t]+3}')
    a(f'buffer_store_dwordx4 {v(o0,4)}, v{ast}, s[20:23], s42 offen')
    a(f'buffer_store_dwordx4 {v(o1,4)}, v{ast}, s[20:23], s44 offen')
    a(f's_cmp_lg_u32 s{sw}, 7')
    branch(a, 's_cbranch_scc1 K1_gate')
    os_ = C.d2[1]
    a(f'v_cvt_pk_bf16_f32 v{os_}, v{accs}, v{accs+1}')
    a(f'v_cvt_pk_bf16_f32 v{os_+1}, v{accs+2}, v{accs+3}')
    a(f'v_and_b32 v{t0}, 1, v{vi}')
    a(f'v_lshlrev_b32 v{t0}, 5, v{t0}')
    a(f'v_lshl_add_u32 v{t0}, v{vq}, 3, v{t0}')
    a(f'buffer_store_dwordx2 {v(os_,2)}, v{t0}, s[20:23], s45 offen')
    a.label('K1_gate')
    a('s_waitcnt lgkmcnt(0)')
    gs = C.t+6
    one = C.t+7
    a(f'v_mov_b32 v{one}, 0x3f803f80')
    a(f'v_mov_b32 v{gs}, 0')
    p0 = C.a2[1][0]
    for i in range(8):
        x0, x1, w0, w1 = p0, p0+1, p0+2, p0+3
        if i & 1: x0, x1, w0, w1 = p0+4, p0+5, p0+6, p0+7
        a(f'v_lshlrev_b32 v{x0}, 16, v{gx+i}')
        a(f'v_and_b32 v{x1}, 0xffff0000, v{gx+i}')
        a(f'v_lshlrev_b32 v{w0}, 16, v{gwr+i}')
        a(f'v_and_b32 v{w1}, 0xffff0000, v{gwr+i}')
        a(f'v_mul_f32 v{x0}, v{x0}, v{w0}')
        a(f'v_mul_f32 v{x1}, v{x1}, v{w1}')
        a(f'v_cvt_pk_bf16_f32 v{x0}, v{x0}, v{x1}')
        a(f'v_dot2_f32_bf16 v{gs}, v{x0}, v{one}, v{gs}')
    for m in ('quad_perm:[1,0,3,2]', 'quad_perm:[2,3,0,1]', 'row_half_mirror', 'row_mirror'):
        a(f'v_add_f32_dpp v{gs}, v{gs}, v{gs} {m} row_mask:0xf bank_mask:0xf')
    a(f'v_readlane_b32 s46, v{gs}, 16')
    a(f'v_readlane_b32 s47, v{gs}, 32')
    a(f'v_readlane_b32 s48, v{gs}, 48')
    a(f'v_add_f32 v{gs}, s46, v{gs}')
    a(f'v_mov_b32 v{t0}, s47')
    a(f'v_add_f32 v{t0}, s48, v{t0}')
    a(f'v_add_f32 v{gs}, v{gs}, v{t0}')
    a(f'v_cvt_pk_bf16_f32 v{gs}, v{gs}, v{gs}')
    a(f'v_and_b32 v{gs}, 0xffff0000, v{gs}')
    a(f'v_mul_f32 v{gs}, {flit(-math.log2(math.e))}, v{gs}')
    a(f'v_exp_f32 v{gs}, v{gs}')
    a(f'v_add_f32 v{gs}, 1.0, v{gs}')
    a(f'v_rcp_f32 v{gs}, v{gs}')
    a(f'v_cvt_pk_bf16_f32 v{gs}, v{gs}, v{gs}')
    a(f'v_and_b32 v{gs}, 0xffff0000, v{gs}')
    a(f's_lshl_b32 s46, s{snp}, 5')
    a(f's_lshl_b32 s47, s33, 2')
    a(f's_add_u32 s46, s46, s47')
    a(f'v_mov_b32 v{t0}, 0')
    a('s_mov_b64 exec, 1')
    a(f'buffer_store_dword v{gs}, v{t0}, s[24:27], s46 offen')
    a.label('K1_end')
    a('s_endpgm')
    return name, a, R.hi, K1_LDS

K2_LDS = 49152
def k2():
    a = Asm(); name = 'gm_colfft_kernel'
    header(a, name)
    R = Regs(1)
    lane, vi, vq = R.alloc(), R.alloc(), R.alloc()
    a('s_cmp_ge_u32 s2, 257')
    a('s_cbranch_scc1 K2_end')
    a('s_load_dwordx4 s[4:7], s[0:1], 8')
    a('s_load_dwordx4 s[8:11], s[0:1], 32')
    a('s_load_dwordx2 s[12:13], s[0:1], 72')
    sw = 40
    a(f'v_lshrrev_b32 v{lane}, 6, v0')
    a(f'v_readfirstlane_b32 s{sw}, v{lane}')
    a(f'v_and_b32 v{lane}, 63, v0')
    a(f'v_and_b32 v{vi}, 15, v0')
    a(f'v_bfe_u32 v{vq}, v0, 4, 2')
    t = R.alloc(8, 2)
    ain = R.alloc()
    a(f'v_lshlrev_b32 v{ain}, 12, v{vq}')
    a(f'v_lshl_add_u32 v{ain}, v{vi}, 2, v{ain}')
    a(f's_lshl_b32 s41, s2, 14')
    a(f's_lshl_b32 s42, s{sw}, 7')
    a(f's_add_u32 s41, s41, s42')
    vk1s, vk, vkst = t, t+1, t+2
    a(f's_and_b32 s42, s2, 7')
    a(f's_lshr_b32 s43, s2, 3')
    a(f's_lshl_b32 s43, s43, 4')
    a(f'v_mov_b32 v{vk1s}, s42')
    a(f'v_add_u32 v{vk}, s43, v{vi}')
    a(f'v_mov_b32 v{vkst}, v{vk}')
    a('s_cmp_lg_u32 s2, 256')
    branch(a, 's_cbranch_scc1 K2_reg')
    a(f'v_and_b32 v{vk1s}, 7, v{vi}')
    a(f'v_mov_b32 v{vk}, 512')
    a(f'v_lshrrev_b32 v{vkst}, 3, v{vi}')
    a(f'v_add_u32 v{vkst}, 512, v{vkst}')
    a.label('K2_reg')
    aw, ast = R.alloc(), R.alloc()
    a(f'v_lshl_add_u32 v{aw}, v{vq}, 9, v{vk1s}')
    a(f'v_mul_u32_u24 v{aw}, 1026, v{aw}')
    a(f'v_lshl_add_u32 v{aw}, v{vk}, 1, v{aw}')
    a(f'v_mul_u32_u24 v{ast}, {VROW}, v{vk1s}')
    a(f'v_lshl_add_u32 v{ast}, v{vkst}, 3, v{ast}')
    a(f'v_mul_u32_u24 v{t+3}, {64*VN}, v{vq}')
    a(f'v_add_u32 v{ast}, v{ast}, v{t+3}')
    a(f's_mul_i32 s44, s{sw}, {16*1026}')
    for kk in range(2):
        for r in range(4):
            i = kk*4 + r
            if i: a(f's_add_u32 s{44+i}, s44, {(8*kk+128*r)*1026}')
    din = [R.alloc(4, 4) for _ in range(2)]
    W = [[[R.alloc(4, 4) for kk in range(2)] for c in range(2)] for st in range(2)]
    for st in range(2):
        for c in range(2):
            for kk in range(2):
                for r in range(4):
                    a(f'v_mov_b32 v{W[st][c][kk]+r}, 0')
    a('s_waitcnt lgkmcnt(0)')
    srd(a, 16, 12, WS_T1, T1_BYTES)
    for nn in range(2):
        for jj in range(4):
            a(f'buffer_load_dword v{din[nn]+jj}, v{ain}, s[16:19], s41 offen offset:{jj*1024+nn*64}')
    for i in range(4):
        srd(a, 20+4*i, 4+2*i, 0, W_BYTES)
    for kk in range(2):
        for st in range(2):
            for r in range(4):
                for c in range(2):
                    sr = 20 + 4*(2*st+c)
                    a(f'buffer_load_short_d16_hi v{W[st][c][kk]+r}, v{aw}, s[{sr}:{sr+3}], s{44+kk*4+r} offen')
    srd(a, 36, 12, WS_V, V_BYTES)
    F = [R.alloc(4, 4) for T in range(2)]
    G = [[R.alloc(4, 4) for T in range(2)] for kk in range(2)]
    fi, f4q, ang, c_, s_, fo, b0 = t, t+1, t+2, t+3, t+4, t+5, t+6
    a(f'v_cvt_f32_u32 v{fi}, v{vi}')
    a(f'v_lshlrev_b32 v{f4q}, 2, v{vq}')
    a(f'v_cvt_f32_u32 v{f4q}, v{f4q}')
    a(f'v_mul_f32 v{fi}, {flit(1/16)}, v{fi}')
    def frag(dst, fo_):
        a(f'v_mul_f32 v{b0}, v{f4q}, v{fo_}')
        for jj in range(4):
            if jj == 0: src = b0
            else:
                a(f'v_fmamk_f32 v{ang}, v{fo_}, {flit(float(jj))}, v{b0}'); src = ang
            a(f'v_cos_f32 v{c_}, v{src}')
            a(f'v_sin_f32 v{s_}, v{src}')
            a(f'v_cvt_pk_bf16_f32 v{dst[0]+jj}, v{c_}, v{s_}')
            a(f'v_cvt_pk_bf16_f32 v{dst[1]+jj}, -v{s_}, v{c_}')
    frag(F, fi)
    a(f's_lshl_b32 s52, s{sw}, 1')
    a(f'v_cvt_f32_u32 v{fo}, s52')
    a(f'v_fmamk_f32 v{fo}, v{fo}, {flit(1/256)}, v{fi}')
    frag(G[0], fo)
    a(f'v_add_f32 v{fo}, {flit(1/256)}, v{fo}')
    frag(G[1], fo)
    awr, ard = R.alloc(), R.alloc()
    a(f'v_lshlrev_b32 v{awr}, 12, v{vq}')
    a(f'v_lshl_add_u32 v{awr}, v{vi}, 4, v{awr}')
    a(f's_lshr_b32 s53, s{sw}, 1')
    a(f's_lshl_b32 s53, s53, 8')
    a(f's_and_b32 s54, s{sw}, 1')
    a(f's_lshl_b32 s54, s54, 3')
    a(f's_add_u32 s53, s53, s54')
    a(f'v_add_u32 v{awr}, s53, v{awr}')
    a(f's_lshl_b32 s54, s{sw}, 11')
    a(f'v_lshl_add_u32 v{ard}, v{lane}, 4, s54')
    acc = [[[R.alloc(4, 4) for T in range(2)] for kk in range(2)] for st in range(2)]
    e = [R.alloc(8, 4) for st in range(2)]
    for nn in range(2):
        a(f's_waitcnt vmcnt({32 + 4*(1-nn)})')
        for T in range(2):
            a(f'v_mfma_f32_16x16x32_bf16 {v(acc[0][nn][T],4)}, {v(F[T],4)}, {v(din[nn],4)}, 0')
    for r in range(4):
        for nn in range(2):
            a(f'v_cvt_pk_bf16_f32 v{e[0]+2*r+nn}, v{acc[0][nn][0]+r}, v{acc[0][nn][1]+r}')
        a(f'ds_write_b64 v{awr}, {v(e[0]+2*r,2)} offset:{1024*r}')
    a('s_waitcnt lgkmcnt(0)')
    a('s_barrier')
    for kk in range(2):
        a(f'ds_read_b128 {v(din[kk],4)}, v{ard} offset:{1024*kk}')
    X = acc[1]
    for kk in range(2):
        a(f's_waitcnt lgkmcnt({1-kk})')
        for T in range(2):
            a(f'v_mfma_f32_16x16x32_bf16 {v(X[kk][T],4)}, {v(G[kk][T],4)}, {v(din[kk],4)}, 0')
    P = [[R.alloc(4, 4) for kk in range(2)] for st in range(2)]
    acc2 = [[[R.alloc(4, 4) for T in range(2)] for kk in range(2)] for st in range(2)]
    for kk in range(2):
        for st in range(2):
            a(f's_waitcnt vmcnt({24 - 16*kk - 8*st})')
            for r in range(4):
                xr, xi = X[kk][0]+r, X[kk][1]+r
                wr, wi = W[st][0][kk]+r, W[st][1][kk]+r
                t0 = t + 2*(r & 1); t1 = t0+1
                a(f'v_mul_f32 v{t0}, v{xi}, v{wi}')
                a(f'v_mul_f32 v{t1}, v{xi}, v{wr}')
                a(f'v_fma_f32 v{t0}, v{xr}, v{wr}, -v{t0}')
                a(f'v_fma_f32 v{t1}, -v{xr}, v{wi}, -v{t1}')
                a(f'v_cvt_pk_bf16_f32 v{P[st][kk]+r}, v{t0}, v{t1}')
            for T in range(2):
                a(f'v_mfma_f32_16x16x32_bf16 {v(acc2[st][kk][T],4)}, {v(F[T],4)}, {v(P[st][kk],4)}, 0')
    for st in range(2):
        for r in range(4):
            for kk in range(2):
                a(f'v_cvt_pk_bf16_f32 v{e[st]+2*r+kk}, v{acc2[st][kk][0]+r}, v{acc2[st][kk][1]+r}')
            a(f'ds_write_b64 v{awr}, {v(e[st]+2*r,2)} offset:{16384*(1+st) + 1024*r}')
    a('s_waitcnt lgkmcnt(0)')
    a('s_barrier')
    for nn in range(2):
        for st in range(2):
            a(f'ds_read_b128 {v(P[st][nn],4)}, v{ard} offset:{16384*(1+st) + 1024*nn}')
    a(f's_mul_i32 s44, s{sw}, {2*VN}')
    for nn in range(2):
        for st in range(2):
            a(f's_waitcnt lgkmcnt({3 - 2*nn - st})')
            for T in range(2):
                a(f'v_mfma_f32_16x16x32_bf16 {v(acc[st][nn][T],4)}, {v(G[nn][T],4)}, {v(P[st][nn],4)}, 0')
    for nn in range(2):
        for r in range(4):
            o = e[nn] + 2*r
            for st in range(2):
                a(f'v_cvt_pk_bf16_f32 v{o+st}, v{acc[st][nn][0]+r}, v{acc[st][nn][1]+r}')
            a(f's_add_u32 s45, s44, {(16*r+nn)*VN}')
            a(f'buffer_store_dwordx2 {v(o,2)}, v{ast}, s[36:39], s45 offen')
    a.label('K2_end')
    a('s_endpgm')
    return name, a, R.hi, K2_LDS

K3_LDS = 16384 + 64
def k3():
    a = Asm(); name = 'gm_rowifft_kernel'
    header(a, name)
    R = Regs(1)
    lane, vi, vq = R.alloc(), R.alloc(), R.alloc()
    a('s_cmp_ge_u32 s2, 256')
    a('s_cbranch_scc1 K3_end')
    a('s_load_dwordx2 s[4:5], s[0:1], 56')
    a('s_load_dwordx2 s[8:9], s[0:1], 72')
    sw, shf, sp = 28, 29, 30
    snp = 2
    a(f'v_lshrrev_b32 v{lane}, 6, v0')
    a(f'v_readfirstlane_b32 s{sw}, v{lane}')
    a(f'v_and_b32 v{lane}, 63, v0')
    a(f'v_and_b32 v{vi}, 15, v0')
    a(f'v_bfe_u32 v{vq}, v0, 4, 2')
    a(f's_and_b32 s{shf}, s{sw}, 1')
    a(f's_lshr_b32 s{sp}, s{sw}, 1')
    av, ag = R.alloc(), R.alloc()
    a(f'v_mul_u32_u24 v{av}, {2*VROW}, v{vq}')
    a(f'v_lshl_add_u32 v{av}, v{vi}, 3, v{av}')
    a(f's_mul_i32 s32, s{snp}, {VN}')
    a(f's_lshl_b32 s33, s{sp}, 10')
    a(f's_lshl_b32 s34, s{shf}, 7')
    a(f's_add_u32 s33, s33, s34')
    a(f's_add_u32 s33, s33, s32')
    a(f's_add_u32 s34, s33, {VROW}')
    a(f's_add_u32 s35, s32, 4096')
    a(f's_add_u32 s36, s35, {VROW}')
    a(f'v_and_b32 v{ag}, 12, v{vi}')
    a(f's_lshl_b32 s37, s{snp}, 5')
    a('s_waitcnt lgkmcnt(0)')
    srd(a, 12, 8, WS_G, G_BYTES)
    ga, gb = R.alloc(), R.alloc()
    a(f'buffer_load_dword v{ga}, v{ag}, s[12:15], s37 offen')
    a(f'buffer_load_dword v{gb}, v{ag}, s[12:15], s37 offen offset:16')
    srd(a, 16, 8, WS_V, V_BYTES)
    B = [R.alloc(4, 4) for jj in range(5)]
    for jj in range(4):
        a(f'buffer_load_dwordx2 {v(B[jj],2)}, v{av}, s[16:19], s33 offen offset:{256*jj}')
        a(f'buffer_load_dwordx2 {v(B[jj]+2,2)}, v{av}, s[16:19], s34 offen offset:{256*jj}')
    a(f'buffer_load_dwordx2 {v(B[4],2)}, v{av}, s[16:19], s35 offen')
    a(f'buffer_load_dwordx2 {v(B[4]+2,2)}, v{av}, s[16:19], s36 offen')
    srd(a, 20, 4, 0, X_BYTES)
    C = Core(R)
    C.consts(a, vi, vq, shf)
    t = C.t
    Mx = R.alloc(4, 4)
    Cc = [R.alloc() for _ in range(2)]; Sc = [R.alloc() for _ in range(2)]
    Ce = [R.alloc() for _ in range(2)]; Se = [R.alloc() for _ in range(2)]
    eps = R.alloc()
    a(f'v_lshrrev_b32 v{t}, 2, v{vi}')
    a(f'v_lshl_add_u32 v{t}, v{t}, 8, s{snp}')
    a(f'v_cvt_f32_u32 v{t}, v{t}')
    a(f'v_and_b32 v{eps}, 2, v{vi}')
    a(f'v_cvt_f32_u32 v{eps}, v{eps}')
    a(f'v_add_f32 v{eps}, -1.0, v{eps}')
    a(f'v_mul_f32 v{t}, {flit(-1/2048)}, v{t}')
    a(f'v_mul_f32 v{t}, v{t}, v{eps}')
    a(f'v_and_b32 v{t+1}, 1, v{vi}')
    a(f'v_cvt_f32_u32 v{t+1}, v{t+1}')
    a(f'v_mul_f32 v{t+1}, {flit(0.25)}, v{t+1}')
    a(f'v_lshlrev_b32 v{t+2}, 1, v{vq}')
    a(f'v_cvt_f32_u32 v{t+2}, v{t+2}')
    a(f'v_fma_f32 v{t+3}, v{t+2}, v{t}, v{t+1}')
    a(f'v_add_f32 v{t+4}, v{t+3}, v{t}')
    sc = 1/(2048*1024*math.sqrt(2))
    for tt in range(2):
        a(f'v_cos_f32 v{Cc[tt]}, v{t+3+tt}')
        a(f'v_sin_f32 v{Sc[tt]}, v{t+3+tt}')
        a(f'v_mul_f32 v{Cc[tt]}, {flit(sc)}, v{Cc[tt]}')
        a(f'v_mul_f32 v{Sc[tt]}, {flit(sc)}, v{Sc[tt]}')
        a(f'v_mul_f32 v{Ce[tt]}, v{eps}, v{Cc[tt]}')
        a(f'v_mul_f32 v{Se[tt]}, v{eps}, v{Sc[tt]}')
    awf, awm, aw0, ard = R.alloc(), R.alloc(), R.alloc(), R.alloc()
    a(f'v_lshlrev_b32 v{awf}, 12, v{vq}')
    a(f's_lshl_b32 s38, s{shf}, 11')
    a(f's_lshl_b32 s39, s{sp}, 8')
    a(f's_add_u32 s40, s38, s39')
    a(f'v_lshlrev_b32 v{t}, 4, v{vi}')
    a(f'v_add3_u32 v{t+5}, v{awf}, v{t}, s40')
    a(f'v_lshl_add_u32 v{t+1}, s{shf}, 4, v{vi}')
    a(f'v_sub_u32 v{t+2}, 32, v{t+1}')
    a(f'v_lshrrev_b32 v{t+3}, 4, v{t+2}')
    a(f'v_lshlrev_b32 v{t+3}, 11, v{t+3}')
    a(f'v_and_b32 v{t+2}, 15, v{t+2}')
    a(f'v_lshl_add_u32 v{t+3}, v{t+2}, 4, v{t+3}')
    a(f's_sub_u32 s41, {7*256}, s39')
    a(f'v_add3_u32 v{awm}, v{awf}, v{t+3}, s41')
    a(f'v_cmp_eq_u32 s[42:43], 0, v{t+1}')
    a(f'v_mov_b32 v{t+2}, 16384')
    a(f'v_cndmask_b32 v{awm}, v{awm}, v{t+2}, s[42:43]')
    a(f'v_add_u32 v{aw0}, s41, v{awf}')
    a(f'v_mov_b32 v{awf}, v{t+5}')
    a(f's_lshl_b32 s44, s{sp}, 12')
    a(f'v_lshl_add_u32 v{ard}, v{lane}, 4, s44')
    ao = R.alloc()
    a(f'v_lshlrev_b32 v{ao}, 6, v{vi}')
    a(f'v_lshl_add_u32 v{ao}, v{vq}, 3, v{ao}')
    a(f's_lshl_b32 s45, s{sp}, 8')
    a(f's_add_u32 s45, s45, s{snp}')
    a(f's_lshl_b32 s45, s45, 11')
    a(f's_lshl_b32 s46, s{shf}, 5')
    a(f's_add_u32 s45, s45, s46')
    a(f's_lshl_b32 s46, s{shf}, 10')
    a(f's_add_u32 s47, s45, s46')
    a(f's_xor_b32 s46, s46, 1024')
    a(f's_add_u32 s48, s45, s46')
    a(f's_add_u32 s49, s47, {1024*2048}')
    a(f's_add_u32 s50, s48, {1024*2048}')
    a(f's_cmp_eq_u32 s{sw}, 0')
    a(f's_cselect_b64 s[52:53], s[42:43], 0')
    a('s_waitcnt vmcnt(10)')
    ha, hb = R.alloc(), R.alloc()
    a(f'v_sub_f32 v{ha}, 1.0, v{ga}')
    a(f'v_sub_f32 v{hb}, 1.0, v{gb}')
    a(f'v_cvt_pk_bf16_f32 v{hb}, v{ha}, v{hb}')
    a(f'v_lshlrev_b32 v{ha}, 16, v{hb}')
    a(f'v_and_b32 v{hb}, 0xffff0000, v{hb}')
    for tt in range(2):
        sg = '' if tt == 0 else '-'
        for st, (ca, cb_) in enumerate(((ga, gb), (ha, hb))):
            a(f'v_mul_f32 v{t}, v{ca}, v{Cc[tt]}')
            a(f'v_mul_f32 v{t+1}, v{ca}, v{Se[tt]}')
            a(f'v_fma_f32 v{t}, {sg}v{cb_}, v{Sc[tt]}, v{t}')
            a(f'v_fma_f32 v{t+1}, {sg}v{cb_}, v{Ce[tt]}, -v{t+1}')
            a(f'v_cvt_pk_bf16_f32 v{Mx+2*tt+st}, v{t}, v{t+1}')
    acc = [C.a1[0][0], C.a1[0][1], C.a1[1][0], C.a1[1][1], C.a2[0][0]]
    for jj in range(5):
        a(f's_waitcnt vmcnt({8-2*jj})')
        a(f'v_mfma_f32_16x16x32_bf16 {v(acc[jj],4)}, {v(Mx,4)}, {v(B[jj],4)}, 0')
    a('s_mov_b64 exec, s[52:53]')
    for c in range(2):
        a(f'v_add_f32 v{acc[0]+c}, v{acc[0]+c}, v{acc[0]+2+c}')
        a(f'v_mul_f32 v{acc[0]+c}, 0.5, v{acc[0]+c}')
    a('s_mov_b64 exec, -1')
    yf, ym = C.d2[0], C.d2[1]
    for jj in range(4):
        a(f'v_cvt_pk_bf16_f32 v{yf+jj}, v{acc[jj]}, v{acc[jj]+1}')
        a(f'v_cvt_pk_bf16_f32 v{ym+3-jj}, v{acc[jj]+2}, v{acc[jj]+3}')
    a(f'ds_write_b128 v{awf}, {v(yf,4)}')
    a(f'ds_write_b128 v{awm}, {v(ym,4)}')
    a(f's_cmp_eq_u32 s{shf}, 1')
    branch(a, 's_cbranch_scc1 K3_mt1')
    a('s_mov_b64 exec, s[42:43]')
    a(f'ds_write2_b32 v{aw0}, v{ym}, v{ym+1} offset0:1 offset1:2')
    a(f'ds_write_b32 v{aw0}, v{ym+2} offset:12')
    a(f's_andn2_b64 exec, s[42:43], s[52:53]')
    a(f'ds_write_b32 v{aw0}, v{ym+3} offset:256')
    a('s_mov_b64 exec, -1')
    branch(a, 's_branch K3_join')
    a.label('K3_mt1')
    a(f's_cmp_lg_u32 s{sw}, 1')
    branch(a, 's_cbranch_scc1 K3_join')
    for c in range(2):
        a(f'v_add_f32 v{acc[4]+c}, v{acc[4]+c}, v{acc[4]+2+c}')
        a(f'v_mul_f32 v{acc[4]+c}, 0.5, v{acc[4]+c}')
    a(f'v_cvt_pk_bf16_f32 v{t}, v{acc[4]}, v{acc[4]+1}')
    a(f'v_cmp_eq_u32 vcc, 0, v{vi}')
    a(f'v_lshlrev_b32 v{t+1}, 12, v{vq}')
    a('s_mov_b64 exec, vcc')
    a(f'ds_write_b32 v{t+1}, v{t} offset:1024')
    a('s_mov_b64 exec, -1')
    a.label('K3_join')
    a('s_waitcnt lgkmcnt(0)')
    a('s_barrier')
    for mt in range(2):
        for ks in range(2):
            a(f'ds_read_b128 {v(C.d1[mt][ks],4)}, v{ard} offset:{2048*mt + 1024*ks}')
    C.stage1(a, {(0,0): 's_waitcnt lgkmcnt(3)', (0,1): 's_waitcnt lgkmcnt(2)', (1,0): 's_waitcnt lgkmcnt(1)', (1,1): 's_waitcnt lgkmcnt(0)'})
    C.twiddle(a, 0); C.stage2(a, 0); C.twiddle(a, 1); C.stage2(a, 1)
    o = C.d1[0][0]
    for nt in range(2):
        for T in range(2):
            oo = o + 4*nt + 2*T
            x = C.a2[nt][T]
            a(f'v_cvt_pk_bf16_f32 v{oo}, v{x}, v{x+1}')
            a(f'v_cvt_pk_bf16_f32 v{oo+1}, v{x+2}, v{x+3}')
            a(f'buffer_store_dwordx2 {v(oo,2)}, v{ao}, s[20:23], s{47+nt+2*T} offen')
    a.label('K3_end')
    a('s_endpgm')
    return name, a, R.hi, K3_LDS

def main(out):
    ks = [k1(), k2(), k3()]
    grids = [256, 257, 256]
    hdr = open('cdna_kernels/%s.s.ref' % NAME).read().split('; Override')[0]
    txt = hdr
    for (name, a, nv, lds), g in zip(ks, grids):
        txt += f'; @launch kernel={name} grid=({g},1,1) block=(512,1,1) lds={lds}\n'
    txt += '.amdgcn_target "amdgcn-amd-amdhsa--gfx950"\n.text\n'
    for (name, a, nv, lds) in ks:
        txt += a.text()
        print(name, 'instrs', a.count, 'nops', a.nops, 'vgprs', nv, file=sys.stderr)
    txt += '.section .rodata,"a"\n'
    for (name, a, nv, lds) in ks:
        txt += descriptor(name, nv)
    open(out, 'w').write(txt)

if __name__ == '__main__':
    main(sys.argv[1] if len(sys.argv) > 1 else 'cdna_kernels/%s.s' % NAME)
```

```python
import re, struct, math

def f32bits(x):
    return struct.unpack('<I', struct.pack('<f', x))[0]
def flit(x):
    return '0x%08x' % f32bits(x)

_reg_re = re.compile(r'^(-?)(\|?)([vsa])(?:(\d+)|\[(\d+):(\d+)\])(\|?)$')

def parse_reg(tok):
    tok = tok.strip()
    if tok.startswith('abs(') or tok.startswith('-abs('):
        tok = tok[tok.index('(')+1:-1]
    if tok in ('vcc',): return [('s', 106), ('s', 107)]
    if tok == 'vcc_lo': return [('s', 106)]
    if tok == 'vcc_hi': return [('s', 107)]
    if tok == 'exec': return [('s', 126), ('s', 127)]
    if tok == 'exec_lo': return [('s', 126)]
    if tok == 'exec_hi': return [('s', 127)]
    if tok == 'm0': return [('s', 124)]
    m = _reg_re.match(tok)
    if not m: return []
    k = m.group(3)
    if m.group(4) is not None: return [(k, int(m.group(4)))]
    return [(k, i) for i in range(int(m.group(5)), int(m.group(6))+1)]

TRANS = ('v_exp_f32', 'v_log_f32', 'v_rcp_f32', 'v_rsq_f32', 'v_sqrt_f32', 'v_sin_f32', 'v_cos_f32')

class Ins:
    def __init__(self, text):
        self.text = text
        t = text.split(';')[0].strip()
        parts = t.split(None, 1)
        self.op = parts[0]
        rest = parts[1] if len(parts) > 1 else ''
        ops = []; cur = ''; depth = 0
        for ch in rest:
            if ch in '[(': depth += 1
            if ch in '])': depth -= 1
            if ch == ',' and depth == 0:
                ops.append(cur.strip()); cur = ''
            else: cur += ch
        if cur.strip(): ops.append(cur.strip())
        mods = []
        if ops:
            sp = ops[-1].split()
            ops[-1] = sp[0]; mods = sp[1:]
        self.ops = ops; self.mods = mods
        op = self.op
        self.is_mfma = op.startswith('v_mfma')
        self.is_valu = op.startswith('v_') and not self.is_mfma
        self.is_trans = any(op.startswith(x) for x in TRANS)
        self.is_dot = op.startswith('v_dot')
        self.is_vmem = op.startswith(('buffer_', 'global_', 'flat_'))
        self.is_ds = op.startswith('ds_')
        self.is_salu = op.startswith('s_')
        self.is_dpp = any(m.startswith(('row_', 'quad_perm', 'wave_')) for m in mods) or op.endswith('_dpp')
        self.is_perml = op.startswith('v_permlane')
        self.is_rdlane = op.startswith(('v_readlane', 'v_readfirstlane', 'v_writelane'))
        self.lds_dma = self.is_vmem and ('lds' in mods or 'load_lds' in op)
        R = []; W = []
        P = [parse_reg(o) for o in ops]
        self.srcC = []; self.srcAB = []
        if self.is_mfma:
            W = P[0]; self.srcAB = P[1] + P[2]; self.srcC = P[3]; R = self.srcAB + self.srcC
            self.passes = 8 if '32x32' in op else 4
        elif self.is_valu:
            if op.startswith('v_cmp'):
                W = P[0]; R = sum(P[1:], [])
                if op.startswith('v_cmpx'): W = W + parse_reg('exec')
            elif self.is_perml or op.startswith('v_swap'):
                W = P[0] + P[1]; R = P[0] + P[1]
            elif op.startswith(('v_add_co', 'v_sub_co', 'v_addc_co', 'v_subb_co', 'v_subrev_co')):
                W = P[0] + P[1]; R = sum(P[2:], [])
            else:
                W = P[0]; R = sum(P[1:], [])
                if op.startswith(('v_fmac', 'v_dot2c', 'v_pk_fmac', 'v_writelane')) or self.is_dpp:
                    R = R + P[0]
                if op.startswith('v_cndmask') and len(ops) == 3: R = R + parse_reg('vcc')
        elif self.is_vmem:
            if op in ('buffer_wbl2', 'buffer_inv'): pass
            elif self.lds_dma:
                R = sum(P, []) + parse_reg('m0')
            elif 'store' in op or ('atomic' in op and 'sc0' not in mods):
                R = sum(P, [])
            else:
                W = P[0]; R = sum(P[1:], [])
                if 'd16' in op or 'atomic' in op: R = R + P[0]
        elif self.is_ds:
            if op.startswith(('ds_write', 'ds_add', 'ds_store')) :
                R = sum(P, [])
            else:
                W = P[0]; R = sum(P[1:], [])
        elif self.is_salu:
            if op.startswith(('s_cmp', 's_cbranch', 's_branch', 's_waitcnt', 's_barrier', 's_nop', 's_endpgm', 's_setprio', 's_sleep', 's_bitcmp')):
                R = sum(P, [])
            else:
                W = P[0] if P else []; R = sum(P[1:], [])
                if 'saveexec' in op: W = W + parse_reg('exec'); R = R + parse_reg('exec')
        self.R = set(R); self.W = set(W)
        self.wide_store = self.is_vmem and 'store' in op and ('x3' in op or 'x4' in op)
        self.store_data = set()
        if self.wide_store:
            self.store_data = set(P[0] if op.startswith('buffer') else P[1])
        self.states = 1
        if op == 's_nop': self.states = int(ops[0], 0) + 1

def required(prev, cur):
    need = 0
    pv = {r for r in prev.W if r[0] in 'va'}
    ps = {r for r in prev.W if r[0] == 's'}
    if prev.is_valu:
        if cur.is_mfma and pv & cur.R: need = max(need, 2)
        if prev.is_trans and cur.is_valu and not cur.is_trans and pv & cur.R: need = max(need, 1)
        if prev.is_trans and (cur.is_vmem or cur.is_ds) and pv & cur.R: need = max(need, 1)
        if cur.is_dpp and pv & cur.R: need = max(need, 2)
        if cur.is_perml and pv & cur.R: need = max(need, 2)
        if cur.is_rdlane and pv & cur.R: need = max(need, 1)
        if ps:
            if cur.is_valu and ps & cur.R: need = max(need, 4 if cur.is_rdlane else 2)
            if cur.is_vmem and ps & cur.R: need = max(need, 5)
            if cur.is_salu and ps & cur.R: need = max(need, 4)
            if cur.is_mfma and ('s', 126) in ps: need = max(need, 4)
            if ('s', 126) in ps and cur.is_dpp: need = max(need, 5)
            if ('s', 126) in ps and (cur.is_rdlane or cur.is_perml): need = max(need, 4)
        if prev.is_dot and (pv & (cur.R | cur.W)):
            if not (cur.op == prev.op and not (pv & set(sum([parse_reg(o) for o in cur.ops[1:3]], [])))):
                need = max(need, 3)
        if any(m.startswith('op_sel') or m.startswith('dst_sel') for m in prev.mods) and not prev.op.startswith('v_pk') and cur.is_valu and pv & (cur.R | cur.W):
            need = max(need, 1)
    if prev.is_mfma:
        p = prev.passes
        n_rw = {4: 8, 8: 12}[p]; n_ov = {4: 6, 8: 10}[p]; n_war = {4: 3, 8: 7}[p]
        if cur.is_mfma:
            if pv & set(cur.srcAB): need = max(need, n_rw)
            if pv & set(cur.srcC):
                if not (set(cur.srcC) == pv and cur.passes == p): need = max(need, n_ov)
            elif pv & cur.W: need = max(need, n_rw)
        else:
            if pv & (cur.R | cur.W): need = max(need, n_rw)
            if cur.is_valu and set(prev.srcC) & cur.W: need = max(need, n_war)
    if prev.wide_store and not cur.is_salu and prev.store_data & cur.W: need = max(need, 2)
    if prev.is_salu and ('s', 124) in prev.W and cur.lds_dma: need = max(need, 1)
    return need

class Asm:
    def __init__(self):
        self.out = []
        self.hist = []
        self.nops = 0
        self.count = 0
        self.protected = set()
    def protect(self, lo, n):
        for i in range(lo, lo+n): self.protected.add(('s', i))
    def unprotect(self, lo, n):
        for i in range(lo, lo+n): self.protected.discard(('s', i))
    def raw(self, text):
        self.out.append(text)
    def comment(self, t): self.out.append('    ; ' + t)
    def label(self, name):
        self.flush()
        self.out.append(name + ':')
    def flush(self, n=12):
        need = 0; dist = 0
        for p in reversed(self.hist):
            w = 0
            if p.is_mfma: w = {4: 8, 8: 12}[p.passes]
            elif p.is_valu: w = 5 if any(r[0] == 's' for r in p.W) else (3 if p.is_dot else 2)
            elif p.wide_store: w = 2
            elif p.is_salu and ('s', 124) in p.W: w = 1
            need = max(need, w - dist)
            dist += p.states
            if dist > 12: break
        if need > 0: self._nop(need)
        self.hist = []
    def _nop(self, n):
        while n > 0:
            k = min(n, 16)
            i = Ins('s_nop %d' % (k-1)); self.hist.append(i); self.out.append('    s_nop %d' % (k-1)); n -= k
            self.nops += 1
    def __call__(self, text):
        for line in text.strip().split('\n'):
            line = line.strip()
            if not line or line.startswith(';'): continue
            cur = Ins(line)
            assert not (cur.W & self.protected), 'write to protected SGPR: ' + line
            need = 0; dist = 0
            for p in reversed(self.hist):
                r = required(p, cur)
                need = max(need, r - dist)
                dist += p.states
                if dist > 12: break
            if need > 0: self._nop(need)
            self.hist.append(cur)
            if len(self.hist) > 40: self.hist = self.hist[-20:]
            self.out.append('    ' + line)
            self.count += 1
            if cur.op.startswith(('s_cbranch', 's_branch')):
                pass
    def text(self): return '\n'.join(self.out) + '\n'

class Regs:
    def __init__(self, start=1): self.n = start; self.hi = start
    def alloc(self, cnt=1, align=1):
        self.n = (self.n + align - 1)//align*align
        b = self.n; self.n += cnt; self.hi = max(self.hi, self.n); return b
def v(b, n=1): return 'v%d' % b if n == 1 else 'v[%d:%d]' % (b, b+n-1)
def s(b, n=1): return 's%d' % b if n == 1 else 's[%d:%d]' % (b, b+n-1)
```

```python
import sys, math
from asmlib import *

NAME = 'gated_mix__spectral_gfnet__spectral_gfnet__prompt'
WS_T1 = 0
T1_BYTES = 264*16384
OPT = dict(xld='', wpf='', t1st='', vst='', ost='', t1ld='', vld='', wld='', pf=1)
WS_V = 0x800000
VROW = 4224
VN = 8*VROW
V_BYTES = 256*VN
WS_G = 0x1800000
G_BYTES = 2048*4
X_BYTES = 2048*1024*2
W_BYTES = 2048*513*2
SGN = 0x80008000

def srd(a, d, base, off, size):
    if off:
        a(f's_add_u32 s{d}, s{base}, {off:#x}')
        a(f's_addc_u32 s{d+1}, s{base+1}, 0')
    else:
        a(f's_mov_b32 s{d}, s{base}')
        a(f's_mov_b32 s{d+1}, s{base+1}')
    a(f's_mov_b32 s{d+2}, {size:#x}')
    a(f's_mov_b32 s{d+3}, 0x00020000')
    a.protect(d, 4)

STAMP = False
WS_STAMP = 0x2000000
class St:
    n = 0
def stamp(a, real=False):
    if not STAMP: return
    r = 64 + 2*St.n; St.n += 1
    assert r + 1 <= 101
    a(f's_memrealtime s[{r}:{r+1}]' if real else f's_memtime s[{r}:{r+1}]')
    a('s_waitcnt lgkmcnt(0)')
def stamp_out(a, kidx, wsreg, sw):
    if not STAMP: return
    a('s_waitcnt vmcnt(0)')
    stamp(a); stamp(a, True)
    a('s_mov_b64 exec, 1')
    srd(a, 56, wsreg, WS_STAMP + kidx*0x100000, 0x100000)
    a(f's_lshl_b32 s60, s2, 3')
    a(f's_add_u32 s60, s60, s{sw}')
    a(f's_lshl_b32 s60, s60, 7')
    a('v_mov_b32 v1, 0')
    for i in range(St.n):
        a(f'v_mov_b32 v2, s{64+2*i}')
        a(f'buffer_store_dword v2, v1, s[56:59], s60 offen offset:{4*i}')
    a('s_getreg_b32 s61, hwreg(HW_REG_XCC_ID)')
    a(f'v_mov_b32 v2, s61')
    a(f'buffer_store_dword v2, v1, s[56:59], s60 offen offset:124')
    a('s_getreg_b32 s61, hwreg(HW_REG_HW_ID)')
    a(f'v_mov_b32 v2, s61')
    a(f'buffer_store_dword v2, v1, s[56:59], s60 offen offset:120')
    St.n = 0

def branch(a, ins):
    a.flush(); a(ins)

class Core:
    def __init__(self, R):
        self.FA = [[R.alloc(4, 4) for ks in range(2)] for T in range(2)]
        self.FB = [[R.alloc(4, 4) for ks in range(2)] for T in range(2)]
        self.twc = R.alloc(8, 2); self.tws = R.alloc(8, 2)
        self.d1 = [[R.alloc(4, 4) for ks in range(2)] for mt in range(2)]
        self.a1 = [[R.alloc(4, 4) for T in range(2)] for mt in range(2)]
        self.d2 = [R.alloc(4, 4) for ks in range(2)]
        self.a2 = self.d1
        self.t = R.alloc(8, 2)
    def consts(self, a, vi, vq, shf):
        t = self.t
        o, fo, f4q, ang, c, sn, m1 = t, t+1, t+2, t+3, t+4, t+5, t+6
        a(f'v_lshl_add_u32 v{o}, s{shf}, 4, v{vi}')
        a(f'v_cvt_f32_u32 v{fo}, v{o}')
        a(f'v_lshlrev_b32 v{f4q}, 2, v{vq}')
        a(f'v_cvt_f32_u32 v{f4q}, v{f4q}')
        a(f'v_and_b32 v{m1}, 1, v{vi}')
        a(f'v_mul_u32_u24 v{m1}, 0x8000, v{m1}')
        a(f'v_lshl_or_b32 v{m1}, v{m1}, 16, v{m1}')
        a(f'v_mul_f32 v{fo}, {flit(1/32)}, v{fo}')
        a(f'v_mul_f32 v{f4q}, v{f4q}, v{fo}')
        m2 = t+7
        a(f'v_xor_b32 v{m2}, {SGN:#x}, v{m1}')
        for jj in range(4):
            if jj == 0: src = f4q
            else:
                a(f'v_fmamk_f32 v{ang}, v{fo}, {flit(float(jj))}, v{f4q}'); src = ang
            a(f'v_cos_f32 v{c}, v{src}')
            a(f'v_sin_f32 v{sn}, v{src}')
            a(f'v_cvt_pk_bf16_f32 v{self.FA[0][0]+jj}, v{c}, v{sn}')
            a(f'v_cvt_pk_bf16_f32 v{self.FA[1][0]+jj}, -v{sn}, v{c}')
            for T in range(2):
                b = self.FA[T][0]+jj
                a(f'v_xor_b32 v{self.FA[T][1]+jj}, v{m1}, v{b}')
                if jj & 1:
                    a(f'v_xor_b32 v{self.FB[T][0]+jj}, {SGN:#x}, v{b}')
                    a(f'v_xor_b32 v{self.FB[T][1]+jj}, v{m2}, v{b}')
                else:
                    a(f'v_mov_b32 v{self.FB[T][0]+jj}, v{b}')
                    a(f'v_xor_b32 v{self.FB[T][1]+jj}, v{m1}, v{b}')
        a(f'v_mul_f32 v{fo}, {flit(1/32)}, v{fo}')
        a(f'v_mul_f32 v{f4q}, {flit(1/32)}, v{f4q}')
        for mt in range(2):
            for r in range(4):
                e = 16*mt + r
                if e == 0: src = f4q
                else:
                    a(f'v_fmamk_f32 v{ang}, v{fo}, {flit(float(e))}, v{f4q}'); src = ang
                a(f'v_cos_f32 v{self.twc+4*mt+r}, v{src}')
                a(f'v_sin_f32 v{self.tws+4*mt+r}, v{src}')
    def stage1(self, a, waits=None):
        for mt in range(2):
            for ks in range(2):
                if waits: a(waits[(mt, ks)])
                for T in range(2):
                    c = '0' if ks == 0 else v(self.a1[mt][T], 4)
                    a(f'v_mfma_f32_16x16x32_bf16 {v(self.a1[mt][T],4)}, {v(self.d1[mt][ks],4)}, {v(self.FA[T][ks],4)}, {c}')
    def twiddle(self, a, mt):
        t = self.t
        yr, yi = self.a1[mt]
        for r in range(4):
            c = self.twc+4*mt+r; sn = self.tws+4*mt+r
            t0 = t + 2*(r & 1); t1 = t0+1
            a(f'v_mul_f32 v{t0}, v{yi+r}, v{sn}')
            a(f'v_mul_f32 v{t1}, v{yr+r}, v{sn}')
            a(f'v_fma_f32 v{t0}, v{yr+r}, v{c}, v{t0}')
            a(f'v_fma_f32 v{t1}, v{yi+r}, v{c}, -v{t1}')
            a(f'v_cvt_pk_bf16_f32 v{self.d2[mt]+r}, v{t0}, v{t1}')
    def stage2(self, a, ks):
        for nt, F in enumerate((self.FA, self.FB)):
            for T in range(2):
                c = '0' if ks == 0 else v(self.a2[nt][T], 4)
                a(f'v_mfma_f32_16x16x32_bf16 {v(self.a2[nt][T],4)}, {v(self.d2[ks],4)}, {v(F[T][ks],4)}, {c}')

def header(a, name):
    a.raw(f'.globl {name}\n.p2align 8\n.type {name},@function\n{name}:')

def descriptor(name, nv, ns=None):
    ns = 102 if STAMP else 64
    nv8 = (nv + 7)//8*8
    return f'''.p2align 6
.amdhsa_kernel {name}
  .amdhsa_next_free_vgpr {nv8}
  .amdhsa_next_free_sgpr {ns}
  .amdhsa_accum_offset {nv8}
  .amdhsa_group_segment_fixed_size 0
  .amdhsa_kernarg_size 80
  .amdhsa_user_sgpr_count 2
  .amdhsa_user_sgpr_kernarg_segment_ptr 1
  .amdhsa_system_sgpr_workgroup_id_x 1
.end_amdhsa_kernel
'''

K1_ZB = 16384
ZP = 4496
K1_LDS = K1_ZB + 4*ZP

def k1():
    a = Asm(); name = 'gm_rowfft_kernel'
    header(a, name)
    R = Regs(1)
    lane, vi, vq = R.alloc(), R.alloc(), R.alloc()
    a('s_cmp_ge_u32 s2, 256')
    a('s_cbranch_scc1 K1_helper')
    stamp(a, True); stamp(a)
    a('s_load_dwordx2 s[4:5], s[0:1], 0')
    a('s_load_dwordx2 s[8:9], s[0:1], 72')
    sw, shf, sp, snp = 28, 29, 30, 31
    a(f'v_lshrrev_b32 v{lane}, 6, v0')
    a(f'v_readfirstlane_b32 s{sw}, v{lane}')
    a(f'v_and_b32 v{lane}, 63, v0')
    a(f'v_and_b32 v{vi}, 15, v0')
    a(f'v_bfe_u32 v{vq}, v0, 4, 2')
    a(f's_and_b32 s{shf}, s{sw}, 1')
    a(f's_lshr_b32 s{sp}, s{sw}, 1')
    a(f's_and_b32 s{snp}, s2, 7')
    a(f's_lshl_b32 s{snp}, s{snp}, 5')
    a(f's_lshr_b32 s3, s2, 3')
    a(f's_add_u32 s{snp}, s{snp}, s3')
    vx, vt = R.alloc(), R.alloc()
    a(f'v_lshlrev_b32 v{vx}, 4, v{lane}')
    a(f'v_and_b32 v{vt}, 16, v{lane}')
    a(f'v_lshlrev_b32 v{vt}, 3, v{vt}')
    a(f'v_xor_b32 v{vx}, v{vx}, v{vt}')
    a(f's_lshl_b32 s32, s{shf}, 5')
    a(f'v_xor_b32 v{vx}, s32, v{vx}')
    a(f's_lshl_b32 s33, s{shf}, 2')
    a(f's_add_u32 s33, s33, s{sp}')
    a(f's_lshl_b32 s34, s33, 8')
    a(f's_add_u32 s34, s34, s{snp}')
    a(f's_lshl_b32 s35, s34, 11')
    a(f's_lshl_b32 s36, s{sw}, 11')
    a(f's_mov_b32 m0, s36')
    a('s_waitcnt lgkmcnt(0)')
    stamp(a)
    srd(a, 12, 4, 0, X_BYTES)
    a(f'buffer_load_dwordx4 v{vx}, s[12:15], s35 offen {OPT["xld"]} lds')
    a(f'buffer_load_dwordx4 v{vx}, s[12:15], s35 offen offset:1024 {OPT["xld"]} lds')
    srd(a, 20, 8, WS_T1, T1_BYTES)
    stamp(a)
    C = Core(R)
    C.consts(a, vi, vq, shf)
    ar = [[R.alloc() for mt in range(2)] for t in range(2)]
    b = ar[0][0]
    t0, t1 = C.t, C.t+1
    a(f'v_and_b32 v{b}, 3, v{vi}')
    a(f'v_lshlrev_b32 v{b}, 3, v{b}')
    a(f'v_bfe_u32 v{t0}, v{vi}, 2, 1')
    a(f'v_mul_u32_u24 v{t0}, {2048+32}, v{t0}')
    a(f'v_add_u32 v{b}, v{b}, v{t0}')
    a(f'v_bfe_u32 v{t0}, v{vi}, 3, 1')
    a(f'v_lshl_add_u32 v{b}, v{t0}, 6, v{b}')
    a(f'v_lshl_add_u32 v{b}, v{vq}, 8, v{b}')
    a(f'v_and_b32 v{t0}, 1, v{vq}')
    a(f'v_lshl_add_u32 v{b}, v{t0}, 7, v{b}')
    a(f's_lshl_b32 s37, s{sp}, 12')
    a(f'v_add_u32 v{b}, s37, v{b}')
    a(f'v_xor_b32 v{ar[0][1]}, 32, v{b}')
    a(f'v_xor_b32 v{ar[1][0]}, 0x80, v{b}')
    a(f'v_xor_b32 v{ar[1][1]}, 0xa0, v{b}')
    af, amb, am0 = R.alloc(), R.alloc(), R.alloc()
    a(f's_mul_i32 s38, s{sp}, {ZP}')
    a(f's_add_u32 s38, s38, {K1_ZB}')
    a(f's_lshl_b32 s39, s{shf}, 7')
    a(f'v_lshlrev_b32 v{t0}, 5, v{vq}')
    a(f'v_add_u32 v{t0}, s39, v{t0}')
    a(f'v_mul_u32_u24 v{t1}, 264, v{vi}')
    a(f'v_add3_u32 v{af}, v{t0}, v{t1}, s38')
    a(f's_add_u32 s40, s38, {264*16 - 4 - 24}')
    a(f'v_add_u32 v{t1}, v{t0}, v{t1}')
    a(f'v_sub_u32 v{amb}, s40, v{t1}')
    a(f'v_cmp_eq_u32 vcc, 0, v{t0}')
    a(f'v_cndmask_b32 v{t1}, 24, 32, vcc')
    a(f'v_add_u32 v{am0}, v{amb}, v{t1}')
    azr, ast, asp = R.alloc(), R.alloc(), R.alloc()
    a(f'v_mul_u32_u24 v{azr}, {ZP}, v{vq}')
    a(f'v_add_u32 v{asp}, {K1_ZB + 264*16}, v{azr}')
    a(f'v_lshrrev_b32 v{t0}, 3, v{vi}')
    a(f'v_mul_u32_u24 v{t0}, 264, v{t0}')
    a(f'v_and_b32 v{t1}, 7, v{vi}')
    a(f'v_lshl_add_u32 v{t0}, v{t1}, 5, v{t0}')
    a(f's_mul_i32 s41, s{sw}, 528')
    a(f's_add_u32 s41, s41, {K1_ZB}')
    a(f'v_add3_u32 v{azr}, v{azr}, v{t0}, s41')
    a(f'v_lshrrev_b32 v{t0}, 2, v{vi}')
    a(f'v_lshlrev_b32 v{ast}, 17, v{t0}')
    a(f'v_lshl_add_u32 v{ast}, v{vq}, 15, v{ast}')
    a(f'v_and_b32 v{t0}, 3, v{vi}')
    a(f'v_lshl_add_u32 v{ast}, v{t0}, 4, v{ast}')
    a(f's_lshl_b32 s42, s{sw}, 19')
    a(f's_lshl_b32 s43, s{snp}, 6')
    a(f's_add_u32 s42, s42, s43')
    a(f's_add_u32 s44, s42, 16384')
    a(f's_add_u32 s45, s43, {256*16384}')
    a(f's_add_u32 s46, s43, {257*16384}')
    Rf = R.alloc(2, 2)
    t2, t3, t4 = C.t+2, C.t+3, C.t+4
    a(f'v_lshrrev_b32 v{t0}, 1, v{vi}')
    a(f'v_lshl_add_u32 v{t1}, v{vq}, 8, s{snp}')
    a(f'v_mul_u32_u24 v{t1}, v{t1}, v{t0}')
    a(f'v_and_b32 v{t2}, 1, v{vi}')
    a(f'v_lshl_add_u32 v{t1}, v{t2}, 9, v{t1}')
    a(f'v_and_b32 v{t2}, 1, v{t0}')
    a(f'v_lshlrev_b32 v{t2}, 9, v{t2}')
    a(f'v_sub_u32 v{t2}, 256, v{t2}')
    a(f'v_add_u32 v{t3}, v{t1}, v{t2}')
    a(f'v_sub_u32 v{t4}, v{t1}, v{t2}')
    a(f'v_cvt_f32_i32 v{t3}, v{t3}')
    a(f'v_cvt_f32_i32 v{t4}, v{t4}')
    a(f'v_mul_f32 v{t3}, {flit(1/2048)}, v{t3}')
    a(f'v_mul_f32 v{t4}, {flit(1/2048)}, v{t4}')
    a(f'v_cos_f32 v{t0}, v{t3}')
    a(f'v_sin_f32 v{t1}, v{t3}')
    a(f'v_cos_f32 v{t2}, v{t4}')
    a(f'v_sin_f32 v{t3}, v{t4}')
    a(f'v_cvt_pk_bf16_f32 v{Rf}, v{t0}, v{t1}')
    a(f'v_cvt_pk_bf16_f32 v{Rf+1}, v{t2}, -v{t3}')
    stamp(a)
    a('s_waitcnt vmcnt(0)')
    stamp(a)
    a('s_barrier')
    stamp(a)
    for mt in range(2):
        for ks in range(2):
            for t in range(2):
                a(f'ds_read_b64_tr_b16 {v(C.d1[mt][ks]+2*t,2)}, v{ar[t][mt]} offset:{1024*ks}')
    C.stage1(a, {(0,0): 's_waitcnt lgkmcnt(6)', (0,1): 's_waitcnt lgkmcnt(4)', (1,0): 's_waitcnt lgkmcnt(2)', (1,1): 's_waitcnt lgkmcnt(0)'})
    C.twiddle(a, 0); C.stage2(a, 0); C.twiddle(a, 1); C.stage2(a, 1)
    zd = [C.a1[0][0], C.a1[0][1]]
    for nt in range(2):
        for r in range(4):
            a(f'v_cvt_pk_bf16_f32 v{zd[nt]+r}, v{C.a2[nt][0]+r}, v{C.a2[nt][1]+r}')
    stamp(a)
    a(f's_cmp_eq_u32 s{shf}, 1')
    branch(a, 's_cbranch_scc1 K1_hf1')
    def fwd(z):
        a(f'ds_write2_b32 v{af}, v{z}, v{z+1} offset0:0 offset1:2')
        a(f'ds_write2_b32 v{af}, v{z+2}, v{z+3} offset0:4 offset1:6')
    fwd(zd[0])
    z = zd[1]
    a(f'ds_write_b32 v{am0}, v{z}')
    a(f'ds_write_b32 v{amb}, v{z+1} offset:16')
    a(f'ds_write2_b32 v{amb}, v{z+2}, v{z+3} offset0:2 offset1:0')
    a('s_mov_b64 exec, 1')
    a(f'ds_write_b32 v{af}, v{zd[0]} offset:4')
    a(f'ds_write_b32 v{af}, v{zd[1]} offset:{264*16}')
    a('s_mov_b64 exec, -1')
    branch(a, 's_branch K1_join')
    a.label('K1_hf1')
    fwd(zd[1])
    z = zd[0]
    a(f'ds_write2_b32 v{amb}, v{z}, v{z+1} offset0:6 offset1:4')
    a(f'ds_write2_b32 v{amb}, v{z+2}, v{z+3} offset0:2 offset1:0')
    a.label('K1_join')
    a('s_waitcnt lgkmcnt(0)')
    a('s_barrier')
    stamp(a)
    zb = C.a1[1][0]
    assert C.a1[1][1] == zb+4
    for t in range(4):
        a(f'ds_read_b64 {v(zb+2*t,2)}, v{azr} offset:{8*t}')
    zs = C.d2[0]
    a(f'ds_read_b64 {v(zs,2)}, v{asp}')
    acc = [C.d1[0][0], C.d1[0][1], C.d1[1][0], C.d1[1][1]]
    for t in range(4):
        a(f's_waitcnt lgkmcnt({4-t})')
        a(f'v_mfma_f32_16x16x16_bf16 {v(acc[t],4)}, {v(Rf,2)}, {v(zb+2*t,2)}, 0')
    a(f's_waitcnt lgkmcnt(0)')
    accs = C.d2[1]
    a(f'v_mfma_f32_16x16x16_bf16 {v(accs,4)}, {v(Rf,2)}, {v(zs,2)}, 0')
    o0, o1 = C.a1[0][0], C.a1[0][1]
    for t in range(4):
        a(f'v_cvt_pk_bf16_f32 v{o0+t}, v{acc[t]}, v{acc[t]+1}')
        a(f'v_cvt_pk_bf16_f32 v{o1+t}, v{acc[t]+2}, v{acc[t]+3}')
    a(f'buffer_store_dwordx4 {v(o0,4)}, v{ast}, s[20:23], s42 offen {OPT["t1st"]}')
    a(f'buffer_store_dwordx4 {v(o1,4)}, v{ast}, s[20:23], s44 offen {OPT["t1st"]}')
    a(f's_cmp_lg_u32 s{sw}, 7')
    branch(a, 's_cbranch_scc1 K1_gate')
    os_ = C.t+2
    a(f'v_cvt_pk_bf16_f32 v{os_}, v{accs}, v{accs+1}')
    a(f'v_cvt_pk_bf16_f32 v{os_+1}, v{accs+2}, v{accs+3}')
    a(f'v_lshlrev_b32 v{t0}, 2, v{vi}')
    a(f'v_lshl_add_u32 v{t0}, v{vq}, 15, v{t0}')
    a(f'buffer_store_dword v{os_}, v{t0}, s[20:23], s45 offen {OPT["t1st"]}')
    a(f'buffer_store_dword v{os_+1}, v{t0}, s[20:23], s46 offen {OPT["t1st"]}')
    a.label('K1_gate')
    stamp(a)
    stamp_out(a, 0, 8, sw)
    a('s_endpgm')
    hi = R.hi
    a.label('K1_helper')
    a.protected = set()
    a('s_cmp_ge_u32 s2, 512')
    a('s_cbranch_scc1 K1_end')
    stamp(a, True); stamp(a)
    a('s_load_dwordx2 s[4:5], s[0:1], 0')
    a('s_load_dwordx2 s[6:7], s[0:1], 48')
    a('s_load_dwordx2 s[8:9], s[0:1], 72')
    R = Regs(1)
    lane, vt, vg, vp = R.alloc(), R.alloc(), R.alloc(), R.alloc()
    a(f'v_lshrrev_b32 v{lane}, 6, v0')
    a(f'v_readfirstlane_b32 s{sw}, v{lane}')
    a(f'v_and_b32 v{lane}, 63, v0')
    a(f's_and_b32 s32, s{sw}, 1')
    a(f's_lshl_b32 s32, s32, 3')
    a(f's_and_b32 s33, s{sw}, 2')
    a(f's_mul_i32 s33, s33, 12')
    a(f's_add_u32 s32, s32, s33')
    a(f's_add_u32 s32, s32, 8')
    a('s_load_dwordx2 s[10:11], s[0:1], s32')
    a(f's_and_b32 s3, s2, 255')
    a(f's_and_b32 s{snp}, s3, 7')
    a(f's_lshl_b32 s{snp}, s{snp}, 5')
    a(f's_lshr_b32 s34, s3, 3')
    a(f's_add_u32 s{snp}, s{snp}, s34')
    a(f's_lshl_b32 s35, s{sw}, 8')
    a(f's_add_u32 s35, s35, s{snp}')
    a(f's_lshl_b32 s35, s35, 11')
    a(f'v_lshlrev_b32 v{vg}, 4, v{lane}')
    a(f'v_lshrrev_b32 v{vp}, 4, v{lane}')
    a(f'v_mul_u32_u24 v{vp}, {8*1026}, v{vp}')
    a(f'v_and_b32 v{vt}, 15, v{lane}')
    a(f'v_lshl_add_u32 v{vp}, v{vt}, 6, v{vp}')
    a(f's_lshl_b32 s36, s34, 3')
    a(f's_lshr_b32 s37, s{sw}, 2')
    a(f's_lshl_b32 s37, s37, 2')
    a(f's_add_u32 s36, s36, s37')
    a(f's_lshl_b32 s36, s36, 3')
    a(f's_and_b32 s37, s3, 7')
    a(f's_add_u32 s36, s36, s37')
    a(f's_mul_i32 s36, s36, 1026')
    a('s_waitcnt lgkmcnt(0)')
    srd(a, 12, 4, 0, X_BYTES)
    gx = R.alloc(8, 4); gwr = R.alloc(8, 4)
    a(f'buffer_load_dwordx4 {v(gx,4)}, v{vg}, s[12:15], s35 offen {OPT["xld"]}')
    a(f'buffer_load_dwordx4 {v(gx+4,4)}, v{vg}, s[12:15], s35 offen offset:1024 {OPT["xld"]}')
    srd(a, 16, 6, 0, 2048)
    a(f'buffer_load_dwordx4 {v(gwr,4)}, v{vg}, s[16:19], 0 offen')
    a(f'buffer_load_dwordx4 {v(gwr+4,4)}, v{vg}, s[16:19], 0 offen offset:1024')
    srd(a, 20, 10, 0, W_BYTES)
    d0 = R.alloc(2)
    if OPT['pf']:
        a(f'buffer_load_ushort v{d0}, v{vp}, s[20:23], s36 offen {OPT["wpf"]}')
        a(f'v_cmp_eq_u32 vcc, 0, v{vt}')
        a('s_mov_b64 exec, vcc')
        a(f'buffer_load_ushort v{d0+1}, v{vp}, s[20:23], s36 offen offset:1024 {OPT["wpf"]}')
        a('s_mov_b64 exec, -1')
    srd(a, 24, 8, WS_G, G_BYTES)
    gs, one, t0 = R.alloc(), R.alloc(), R.alloc()
    a(f'v_mov_b32 v{one}, 0x3f803f80')
    a(f'v_mov_b32 v{gs}, 0')
    p0 = R.alloc(8)
    a(f's_waitcnt vmcnt({2 if OPT["pf"] else 0})')
    stamp(a)
    for i in range(8):
        x0, x1, w0, w1 = p0, p0+1, p0+2, p0+3
        if i & 1: x0, x1, w0, w1 = p0+4, p0+5, p0+6, p0+7
        a(f'v_lshlrev_b32 v{x0}, 16, v{gx+i}')
        a(f'v_and_b32 v{x1}, 0xffff0000, v{gx+i}')
        a(f'v_lshlrev_b32 v{w0}, 16, v{gwr+i}')
        a(f'v_and_b32 v{w1}, 0xffff0000, v{gwr+i}')
        a(f'v_mul_f32 v{x0}, v{x0}, v{w0}')
        a(f'v_mul_f32 v{x1}, v{x1}, v{w1}')
        a(f'v_cvt_pk_bf16_f32 v{x0}, v{x0}, v{x1}')
        a(f'v_dot2_f32_bf16 v{gs}, v{x0}, v{one}, v{gs}')
    for m in ('quad_perm:[1,0,3,2]', 'quad_perm:[2,3,0,1]', 'row_half_mirror', 'row_mirror'):
        a(f'v_add_f32_dpp v{gs}, v{gs}, v{gs} {m} row_mask:0xf bank_mask:0xf')
    a(f'v_readlane_b32 s46, v{gs}, 16')
    a(f'v_readlane_b32 s47, v{gs}, 32')
    a(f'v_readlane_b32 s48, v{gs}, 48')
    a(f'v_add_f32 v{gs}, s46, v{gs}')
    a(f'v_mov_b32 v{t0}, s47')
    a(f'v_add_f32 v{t0}, s48, v{t0}')
    a(f'v_add_f32 v{gs}, v{gs}, v{t0}')
    a(f'v_cvt_pk_bf16_f32 v{gs}, v{gs}, v{gs}')
    a(f'v_and_b32 v{gs}, 0xffff0000, v{gs}')
    a(f'v_mul_f32 v{gs}, {flit(-math.log2(math.e))}, v{gs}')
    a(f'v_exp_f32 v{gs}, v{gs}')
    a(f'v_add_f32 v{gs}, 1.0, v{gs}')
    a(f'v_rcp_f32 v{gs}, v{gs}')
    a(f'v_cvt_pk_bf16_f32 v{gs}, v{gs}, v{gs}')
    a(f'v_and_b32 v{gs}, 0xffff0000, v{gs}')
    a(f's_lshl_b32 s46, s{snp}, 5')
    a(f's_lshl_b32 s47, s{sw}, 2')
    a(f's_add_u32 s46, s46, s47')
    a(f'v_mov_b32 v{t0}, 0')
    a('s_mov_b64 exec, 1')
    a(f'buffer_store_dword v{gs}, v{t0}, s[24:27], s46 offen')
    stamp(a)
    stamp_out(a, 0, 8, sw)
    a.label('K1_end')
    a('s_endpgm')
    return name, a, max(hi, R.hi), K1_LDS

K2_LDS = 49152
def k2():
    a = Asm(); name = 'gm_colfft_kernel'
    header(a, name)
    R = Regs(1)
    lane, vi, vq = R.alloc(), R.alloc(), R.alloc()
    a('s_cmp_ge_u32 s2, 264')
    a('s_cbranch_scc1 K2_end')
    stamp(a, True); stamp(a)
    a('s_load_dwordx4 s[4:7], s[0:1], 8')
    a('s_load_dwordx4 s[8:11], s[0:1], 32')
    a('s_load_dwordx2 s[12:13], s[0:1], 72')
    sw = 40
    a(f'v_lshrrev_b32 v{lane}, 6, v0')
    a(f'v_readfirstlane_b32 s{sw}, v{lane}')
    a(f'v_and_b32 v{lane}, 63, v0')
    a(f'v_and_b32 v{vi}, 15, v0')
    a(f'v_bfe_u32 v{vq}, v0, 4, 2')
    t = R.alloc(8, 2)
    ain = R.alloc()
    a(f'v_lshlrev_b32 v{ain}, 12, v{vq}')
    a(f'v_lshl_add_u32 v{ain}, v{vi}, 2, v{ain}')
    a(f's_lshl_b32 s41, s2, 14')
    a(f's_lshl_b32 s42, s{sw}, 7')
    a(f's_add_u32 s41, s41, s42')
    aw, ast = R.alloc(), R.alloc()
    a(f's_and_b32 s42, s2, 7')
    a(f's_lshr_b32 s43, s2, 3')
    a(f'v_mul_u32_u24 v{aw}, {512*1026}, v{vq}')
    a(f'v_lshl_add_u32 v{aw}, v{vi}, 1, v{aw}')
    a(f'v_mul_u32_u24 v{ast}, {64*VN}, v{vq}')
    a(f'v_lshl_add_u32 v{ast}, v{vi}, 3, v{ast}')
    a(f's_mul_i32 s55, s42, {VROW}')
    a(f's_lshl_b32 s3, s43, 7')
    a(f's_add_u32 s55, s55, s3')
    a(f's_mul_i32 s42, s42, 1026')
    a(f's_lshl_b32 s43, s43, 5')
    a(f's_add_u32 s42, s42, s43')
    a(f's_mul_i32 s44, s{sw}, {16*1026}')
    a(f's_add_u32 s44, s44, s42')
    for kk in range(2):
        for r in range(4):
            i = kk*4 + r
            if i: a(f's_add_u32 s{44+i}, s44, {(8*kk+128*r)*1026}')
    din = [R.alloc(4, 4) for _ in range(2)]
    W = [[[R.alloc(4, 4) for kk in range(2)] for c in range(2)] for st in range(2)]
    for st in range(2):
        for c in range(2):
            for kk in range(2):
                for r in range(4):
                    a(f'v_mov_b32 v{W[st][c][kk]+r}, 0')
    a('s_waitcnt lgkmcnt(0)')
    stamp(a)
    srd(a, 16, 12, WS_T1, T1_BYTES)
    for nn in range(2):
        for jj in range(4):
            a(f'buffer_load_dword v{din[nn]+jj}, v{ain}, s[16:19], s41 offen offset:{jj*1024+nn*64} {OPT["t1ld"]}')
    a('s_barrier')
    for i in range(4):
        srd(a, 20+4*i, 4+2*i, 0, W_BYTES)
    for kk in range(2):
        for st in range(2):
            for r in range(4):
                for c in range(2):
                    sr = 20 + 4*(2*st+c)
                    a(f'buffer_load_short_d16_hi v{W[st][c][kk]+r}, v{aw}, s[{sr}:{sr+3}], s{44+kk*4+r} offen {OPT["wld"]}')
    srd(a, 36, 12, WS_V, V_BYTES)
    stamp(a)
    F = [R.alloc(4, 4) for T in range(2)]
    G = [[R.alloc(4, 4) for T in range(2)] for kk in range(2)]
    fi, f4q, ang, c_, s_, fo, b0 = t, t+1, t+2, t+3, t+4, t+5, t+6
    a(f'v_cvt_f32_u32 v{fi}, v{vi}')
    a(f'v_lshlrev_b32 v{f4q}, 2, v{vq}')
    a(f'v_cvt_f32_u32 v{f4q}, v{f4q}')
    a(f'v_mul_f32 v{fi}, {flit(1/16)}, v{fi}')
    def frag(dst, fo_):
        a(f'v_mul_f32 v{b0}, v{f4q}, v{fo_}')
        for jj in range(4):
            if jj == 0: src = b0
            else:
                a(f'v_fmamk_f32 v{ang}, v{fo_}, {flit(float(jj))}, v{b0}'); src = ang
            a(f'v_cos_f32 v{c_}, v{src}')
            a(f'v_sin_f32 v{s_}, v{src}')
            a(f'v_cvt_pk_bf16_f32 v{dst[0]+jj}, v{c_}, v{s_}')
            a(f'v_cvt_pk_bf16_f32 v{dst[1]+jj}, -v{s_}, v{c_}')
    frag(F, fi)
    a(f's_lshl_b32 s52, s{sw}, 1')
    a(f'v_cvt_f32_u32 v{fo}, s52')
    a(f'v_fmamk_f32 v{fo}, v{fo}, {flit(1/256)}, v{fi}')
    frag(G[0], fo)
    a(f'v_add_f32 v{fo}, {flit(1/256)}, v{fo}')
    frag(G[1], fo)
    awr, ard = R.alloc(), R.alloc()
    a(f'v_lshlrev_b32 v{awr}, 12, v{vq}')
    a(f'v_lshl_add_u32 v{awr}, v{vi}, 4, v{awr}')
    a(f's_lshr_b32 s53, s{sw}, 1')
    a(f's_lshl_b32 s53, s53, 8')
    a(f's_and_b32 s54, s{sw}, 1')
    a(f's_lshl_b32 s54, s54, 3')
    a(f's_add_u32 s53, s53, s54')
    a(f'v_add_u32 v{awr}, s53, v{awr}')
    a(f's_lshl_b32 s54, s{sw}, 11')
    a(f'v_lshl_add_u32 v{ard}, v{lane}, 4, s54')
    acc = [[[R.alloc(4, 4) for T in range(2)] for kk in range(2)] for st in range(2)]
    P1 = R.alloc(8, 4)
    e = [P1, None]
    stamp(a)
    for nn in range(2):
        a(f's_waitcnt vmcnt({32 + 4*(1-nn)})')
        if nn: stamp(a)
        for T in range(2):
            a(f'v_mfma_f32_16x16x32_bf16 {v(acc[0][nn][T],4)}, {v(F[T],4)}, {v(din[nn],4)}, 0')
    for r in range(4):
        for nn in range(2):
            a(f'v_cvt_pk_bf16_f32 v{e[0]+2*r+nn}, v{acc[0][nn][0]+r}, v{acc[0][nn][1]+r}')
        a(f'ds_write_b64 v{awr}, {v(e[0]+2*r,2)} offset:{1024*r}')
    a('s_waitcnt lgkmcnt(0)')
    a('s_barrier')
    stamp(a)
    for kk in range(2):
        a(f'ds_read_b128 {v(din[kk],4)}, v{ard} offset:{1024*kk}')
    X = acc[1]
    for kk in range(2):
        a(f's_waitcnt lgkmcnt({1-kk})')
        for T in range(2):
            a(f'v_mfma_f32_16x16x32_bf16 {v(X[kk][T],4)}, {v(G[kk][T],4)}, {v(din[kk],4)}, 0')
    P = [din, [P1, P1+4]]
    acc2 = [[acc[0][0], X[0]], [acc[0][1], [W[0][0][0], W[0][1][0]]]]
    for kk in range(2):
        for st in range(2):
            if kk == 0 and st == 0: stamp(a)
            a(f's_waitcnt vmcnt({24 - 16*kk - 8*st})')
            stamp(a)
            for r in range(4):
                xr, xi = X[kk][0]+r, X[kk][1]+r
                wr, wi = W[st][0][kk]+r, W[st][1][kk]+r
                t0 = t + 2*(r & 1); t1 = t0+1
                a(f'v_mul_f32 v{t0}, v{xi}, v{wi}')
                a(f'v_mul_f32 v{t1}, v{xi}, v{wr}')
                a(f'v_fma_f32 v{t0}, v{xr}, v{wr}, -v{t0}')
                a(f'v_fma_f32 v{t1}, -v{xr}, v{wi}, -v{t1}')
                a(f'v_cvt_pk_bf16_f32 v{P[st][kk]+r}, v{t0}, v{t1}')
            for T in range(2):
                a(f'v_mfma_f32_16x16x32_bf16 {v(acc2[st][kk][T],4)}, {v(F[T],4)}, {v(P[st][kk],4)}, 0')
    assert W[1][0][1] == W[1][0][0]+4 and W[1][1][1] == W[1][1][0]+4
    e = [W[1][0][0], W[1][1][0]]
    for st in range(2):
        for r in range(4):
            for kk in range(2):
                a(f'v_cvt_pk_bf16_f32 v{e[st]+2*r+kk}, v{acc2[st][kk][0]+r}, v{acc2[st][kk][1]+r}')
            a(f'ds_write_b64 v{awr}, {v(e[st]+2*r,2)} offset:{16384*(1+st) + 1024*r}')
    a('s_waitcnt lgkmcnt(0)')
    stamp(a)
    a('s_barrier')
    stamp(a)
    for nn in range(2):
        for st in range(2):
            a(f'ds_read_b128 {v(P[st][nn],4)}, v{ard} offset:{16384*(1+st) + 1024*nn}')
    a(f's_mul_i32 s44, s{sw}, {2*VN}')
    a(f's_add_u32 s44, s44, s55')
    for nn in range(2):
        for st in range(2):
            a(f's_waitcnt lgkmcnt({3 - 2*nn - st})')
            for T in range(2):
                a(f'v_mfma_f32_16x16x32_bf16 {v(acc[st][nn][T],4)}, {v(G[nn][T],4)}, {v(P[st][nn],4)}, 0')
    for nn in range(2):
        for r in range(4):
            o = e[nn] + 2*r
            for st in range(2):
                a(f'v_cvt_pk_bf16_f32 v{o+st}, v{acc[st][nn][0]+r}, v{acc[st][nn][1]+r}')
            a(f's_add_u32 s45, s44, {(16*r+nn)*VN}')
            a(f'buffer_store_dwordx2 {v(o,2)}, v{ast}, s[36:39], s45 offen {OPT["vst"]}')
    stamp(a)
    stamp_out(a, 1, 12, sw)
    a.label('K2_end')
    a('s_endpgm')
    return name, a, R.hi, K2_LDS

K3_LDS = 16384 + 64
def k3():
    a = Asm(); name = 'gm_rowifft_kernel'
    header(a, name)
    R = Regs(1)
    lane, vi, vq = R.alloc(), R.alloc(), R.alloc()
    a('s_cmp_ge_u32 s2, 256')
    a('s_cbranch_scc1 K3_end')
    stamp(a, True); stamp(a)
    a('s_load_dwordx2 s[4:5], s[0:1], 56')
    a('s_load_dwordx2 s[8:9], s[0:1], 72')
    sw, shf, sp = 28, 29, 30
    snp = 2
    a(f'v_lshrrev_b32 v{lane}, 6, v0')
    a(f'v_readfirstlane_b32 s{sw}, v{lane}')
    a(f'v_and_b32 v{lane}, 63, v0')
    a(f'v_and_b32 v{vi}, 15, v0')
    a(f'v_bfe_u32 v{vq}, v0, 4, 2')
    a(f's_and_b32 s{shf}, s{sw}, 1')
    a(f's_lshr_b32 s{sp}, s{sw}, 1')
    av, ag = R.alloc(), R.alloc()
    a(f'v_mul_u32_u24 v{av}, {2*VROW}, v{vq}')
    a(f'v_lshl_add_u32 v{av}, v{vi}, 3, v{av}')
    a(f's_mul_i32 s32, s{snp}, {VN}')
    a(f's_lshl_b32 s33, s{sp}, 10')
    a(f's_lshl_b32 s34, s{shf}, 7')
    a(f's_add_u32 s33, s33, s34')
    a(f's_add_u32 s33, s33, s32')
    a(f's_add_u32 s34, s33, {VROW}')
    a(f's_add_u32 s35, s32, 4096')
    a(f's_add_u32 s36, s35, {VROW}')
    a(f'v_and_b32 v{ag}, 12, v{vi}')
    a(f's_lshl_b32 s37, s{snp}, 5')
    a('s_waitcnt lgkmcnt(0)')
    stamp(a)
    srd(a, 12, 8, WS_G, G_BYTES)
    ga, gb = R.alloc(), R.alloc()
    a(f'buffer_load_dword v{ga}, v{ag}, s[12:15], s37 offen')
    a(f'buffer_load_dword v{gb}, v{ag}, s[12:15], s37 offen offset:16')
    srd(a, 16, 8, WS_V, V_BYTES)
    B = [R.alloc(4, 4) for jj in range(5)]
    for jj in range(4):
        a(f'buffer_load_dwordx2 {v(B[jj],2)}, v{av}, s[16:19], s33 offen offset:{256*jj} {OPT["vld"]}')
        a(f'buffer_load_dwordx2 {v(B[jj]+2,2)}, v{av}, s[16:19], s34 offen offset:{256*jj} {OPT["vld"]}')
    a(f'buffer_load_dwordx2 {v(B[4],2)}, v{av}, s[16:19], s35 offen')
    a(f'buffer_load_dwordx2 {v(B[4]+2,2)}, v{av}, s[16:19], s36 offen')
    srd(a, 20, 4, 0, X_BYTES)
    stamp(a)
    C = Core(R)
    C.consts(a, vi, vq, shf)
    t = C.t
    Mx = R.alloc(4, 4)
    Cc = [R.alloc() for _ in range(2)]; Sc = [R.alloc() for _ in range(2)]
    Ce = [R.alloc() for _ in range(2)]; Se = [R.alloc() for _ in range(2)]
    eps = R.alloc()
    a(f'v_lshrrev_b32 v{t}, 2, v{vi}')
    a(f'v_lshl_add_u32 v{t}, v{t}, 8, s{snp}')
    a(f'v_cvt_f32_u32 v{t}, v{t}')
    a(f'v_and_b32 v{eps}, 2, v{vi}')
    a(f'v_cvt_f32_u32 v{eps}, v{eps}')
    a(f'v_add_f32 v{eps}, -1.0, v{eps}')
    a(f'v_mul_f32 v{t}, {flit(-1/2048)}, v{t}')
    a(f'v_mul_f32 v{t}, v{t}, v{eps}')
    a(f'v_and_b32 v{t+1}, 1, v{vi}')
    a(f'v_cvt_f32_u32 v{t+1}, v{t+1}')
    a(f'v_mul_f32 v{t+1}, {flit(0.25)}, v{t+1}')
    a(f'v_lshlrev_b32 v{t+2}, 1, v{vq}')
    a(f'v_cvt_f32_u32 v{t+2}, v{t+2}')
    a(f'v_fma_f32 v{t+3}, v{t+2}, v{t}, v{t+1}')
    a(f'v_add_f32 v{t+4}, v{t+3}, v{t}')
    sc = 1/(2048*1024*math.sqrt(2))
    for tt in range(2):
        a(f'v_cos_f32 v{Cc[tt]}, v{t+3+tt}')
        a(f'v_sin_f32 v{Sc[tt]}, v{t+3+tt}')
        a(f'v_mul_f32 v{Cc[tt]}, {flit(sc)}, v{Cc[tt]}')
        a(f'v_mul_f32 v{Sc[tt]}, {flit(sc)}, v{Sc[tt]}')
        a(f'v_mul_f32 v{Ce[tt]}, v{eps}, v{Cc[tt]}')
        a(f'v_mul_f32 v{Se[tt]}, v{eps}, v{Sc[tt]}')
    awf, awm, aw0, ard = R.alloc(), R.alloc(), R.alloc(), R.alloc()
    a(f'v_lshlrev_b32 v{awf}, 12, v{vq}')
    a(f's_lshl_b32 s38, s{shf}, 11')
    a(f's_lshl_b32 s39, s{sp}, 8')
    a(f's_add_u32 s40, s38, s39')
    a(f'v_lshlrev_b32 v{t}, 4, v{vi}')
    a(f'v_add3_u32 v{t+5}, v{awf}, v{t}, s40')
    a(f'v_lshl_add_u32 v{t+1}, s{shf}, 4, v{vi}')
    a(f'v_sub_u32 v{t+2}, 32, v{t+1}')
    a(f'v_lshrrev_b32 v{t+3}, 4, v{t+2}')
    a(f'v_lshlrev_b32 v{t+3}, 11, v{t+3}')
    a(f'v_and_b32 v{t+2}, 15, v{t+2}')
    a(f'v_lshl_add_u32 v{t+3}, v{t+2}, 4, v{t+3}')
    a(f's_sub_u32 s41, {7*256}, s39')
    a(f'v_add3_u32 v{awm}, v{awf}, v{t+3}, s41')
    a(f'v_cmp_eq_u32 s[42:43], 0, v{t+1}')
    a(f'v_mov_b32 v{t+2}, 16384')
    a(f'v_cndmask_b32 v{awm}, v{awm}, v{t+2}, s[42:43]')
    a(f'v_add_u32 v{aw0}, s41, v{awf}')
    a(f'v_mov_b32 v{awf}, v{t+5}')
    a(f's_lshl_b32 s44, s{sp}, 12')
    a(f'v_lshl_add_u32 v{ard}, v{lane}, 4, s44')
    ao = R.alloc()
    a(f'v_lshlrev_b32 v{ao}, 6, v{vi}')
    a(f'v_lshl_add_u32 v{ao}, v{vq}, 3, v{ao}')
    a(f's_lshl_b32 s45, s{sp}, 8')
    a(f's_add_u32 s45, s45, s{snp}')
    a(f's_lshl_b32 s45, s45, 11')
    a(f's_lshl_b32 s46, s{shf}, 5')
    a(f's_add_u32 s45, s45, s46')
    a(f's_lshl_b32 s46, s{shf}, 10')
    a(f's_add_u32 s47, s45, s46')
    a(f's_xor_b32 s46, s46, 1024')
    a(f's_add_u32 s48, s45, s46')
    a(f's_add_u32 s49, s47, {1024*2048}')
    a(f's_add_u32 s50, s48, {1024*2048}')
    a(f's_cmp_eq_u32 s{sw}, 0')
    a(f's_cselect_b64 s[52:53], s[42:43], 0')
    stamp(a)
    a('s_waitcnt vmcnt(10)')
    stamp(a)
    ha, hb = R.alloc(), R.alloc()
    a(f'v_sub_f32 v{ha}, 1.0, v{ga}')
    a(f'v_sub_f32 v{hb}, 1.0, v{gb}')
    a(f'v_cvt_pk_bf16_f32 v{hb}, v{ha}, v{hb}')
    a(f'v_lshlrev_b32 v{ha}, 16, v{hb}')
    a(f'v_and_b32 v{hb}, 0xffff0000, v{hb}')
    for tt in range(2):
        sg = '' if tt == 0 else '-'
        for st, (ca, cb_) in enumerate(((ga, gb), (ha, hb))):
            a(f'v_mul_f32 v{t}, v{ca}, v{Cc[tt]}')
            a(f'v_mul_f32 v{t+1}, v{ca}, v{Se[tt]}')
            a(f'v_fma_f32 v{t}, {sg}v{cb_}, v{Sc[tt]}, v{t}')
            a(f'v_fma_f32 v{t+1}, {sg}v{cb_}, v{Ce[tt]}, -v{t+1}')
            a(f'v_cvt_pk_bf16_f32 v{Mx+2*tt+st}, v{t}, v{t+1}')
    acc = [C.a1[0][0], C.a1[0][1], C.a1[1][0], C.a1[1][1], C.a2[0][0]]
    for jj in range(5):
        a(f's_waitcnt vmcnt({8-2*jj})')
        a(f'v_mfma_f32_16x16x32_bf16 {v(acc[jj],4)}, {v(Mx,4)}, {v(B[jj],4)}, 0')
    stamp(a)
    a('s_mov_b64 exec, s[52:53]')
    for c in range(2):
        a(f'v_add_f32 v{acc[0]+c}, v{acc[0]+c}, v{acc[0]+2+c}')
        a(f'v_mul_f32 v{acc[0]+c}, 0.5, v{acc[0]+c}')
    a('s_mov_b64 exec, -1')
    yf, ym = C.d2[0], C.d2[1]
    for jj in range(4):
        a(f'v_cvt_pk_bf16_f32 v{yf+jj}, v{acc[jj]}, v{acc[jj]+1}')
        a(f'v_cvt_pk_bf16_f32 v{ym+3-jj}, v{acc[jj]+2}, v{acc[jj]+3}')
    a(f'ds_write_b128 v{awf}, {v(yf,4)}')
    a(f'ds_write_b128 v{awm}, {v(ym,4)}')
    a(f's_cmp_eq_u32 s{shf}, 1')
    branch(a, 's_cbranch_scc1 K3_mt1')
    a('s_mov_b64 exec, s[42:43]')
    a(f'ds_write2_b32 v{aw0}, v{ym}, v{ym+1} offset0:1 offset1:2')
    a(f'ds_write_b32 v{aw0}, v{ym+2} offset:12')
    a(f's_andn2_b64 exec, s[42:43], s[52:53]')
    a(f'ds_write_b32 v{aw0}, v{ym+3} offset:256')
    a('s_mov_b64 exec, -1')
    branch(a, 's_branch K3_join')
    a.label('K3_mt1')
    a(f's_cmp_lg_u32 s{sw}, 1')
    branch(a, 's_cbranch_scc1 K3_join')
    for c in range(2):
        a(f'v_add_f32 v{acc[4]+c}, v{acc[4]+c}, v{acc[4]+2+c}')
        a(f'v_mul_f32 v{acc[4]+c}, 0.5, v{acc[4]+c}')
    a(f'v_cvt_pk_bf16_f32 v{t}, v{acc[4]}, v{acc[4]+1}')
    a(f'v_cmp_eq_u32 vcc, 0, v{vi}')
    a(f'v_lshlrev_b32 v{t+1}, 12, v{vq}')
    a('s_mov_b64 exec, vcc')
    a(f'ds_write_b32 v{t+1}, v{t} offset:1024')
    a('s_mov_b64 exec, -1')
    a.label('K3_join')
    a('s_waitcnt lgkmcnt(0)')
    stamp(a)
    a('s_barrier')
    stamp(a)
    for mt in range(2):
        for ks in range(2):
            a(f'ds_read_b128 {v(C.d1[mt][ks],4)}, v{ard} offset:{2048*mt + 1024*ks}')
    C.stage1(a, {(0,0): 's_waitcnt lgkmcnt(3)', (0,1): 's_waitcnt lgkmcnt(2)', (1,0): 's_waitcnt lgkmcnt(1)', (1,1): 's_waitcnt lgkmcnt(0)'})
    C.twiddle(a, 0); C.stage2(a, 0); C.twiddle(a, 1); C.stage2(a, 1)
    o = C.a1[0][0]
    for nt in range(2):
        for T in range(2):
            oo = o + 4*nt + 2*T
            x = C.a2[nt][T]
            a(f'v_cvt_pk_bf16_f32 v{oo}, v{x}, v{x+1}')
            a(f'v_cvt_pk_bf16_f32 v{oo+1}, v{x+2}, v{x+3}')
            a(f'buffer_store_dwordx2 {v(oo,2)}, v{ao}, s[20:23], s{47+nt+2*T} offen {OPT["ost"]}')
    stamp(a)
    stamp_out(a, 2, 8, sw)
    a.label('K3_end')
    a('s_endpgm')
    return name, a, R.hi, K3_LDS

def main(out):
    ks = [k1(), k2(), k3()]
    grids = [512, 264, 256]
    hdr = open('cdna_kernels/%s.s.ref' % NAME).read().split('; Override')[0]
    txt = hdr
    for (name, a, nv, lds), g in zip(ks, grids):
        txt += f'; @launch kernel={name} grid=({g},1,1) block=(512,1,1) lds={lds}\n'
    txt += '.amdgcn_target "amdgcn-amd-amdhsa--gfx950"\n.text\n'
    for (name, a, nv, lds) in ks:
        txt += a.text()
        print(name, 'instrs', a.count, 'nops', a.nops, 'vgprs', nv, file=sys.stderr)
    txt += '.section .rodata,"a"\n'
    for (name, a, nv, lds) in ks:
        txt += descriptor(name, nv)
    open(out, 'w').write(txt)

if __name__ == '__main__':
    for arg in list(sys.argv):
        if '=' in arg:
            k_, v_ = arg.split('='); OPT[k_] = int(v_) if v_.isdigit() else v_.replace('+', ' '); sys.argv.remove(arg)
    if '--stamp' in sys.argv:
        STAMP = True; sys.argv.remove('--stamp')
    main(sys.argv[1] if len(sys.argv) > 1 else 'cdna_kernels/%s.s' % NAME)
```

```python
import sys
from asmlib import *
from gen import srd, header, descriptor, X_BYTES, W_BYTES
base = open(sys.argv[1]).read()
def add_first(s, name, a, grid, block, nv, out):
    line = f'; @launch kernel={name} grid=({grid},1,1) block=({block},1,1) lds=0\n'
    j = s.index('; @launch'); s = s[:j] + line + s[j:]
    s = s.replace('.section .rodata,"a"\n', a.text() + '.section .rodata,"a"\n')
    s += descriptor(name, nv)
    open(out, 'w').write(s)
def touch(step_log2, what, out):
    a = Asm(); name = 'gm_touch_kernel'; header(a, name)
    a('s_load_dwordx4 s[4:7], s[0:1], 0')
    a('s_load_dwordx2 s[8:9], s[0:1], 16')
    a('s_load_dwordx4 s[12:15], s[0:1], 32')
    a('s_load_dwordx2 s[16:17], s[0:1], 56')
    a('s_load_dwordx2 s[18:19], s[0:1], 72')
    a(f'v_lshlrev_b32 v1, {step_log2}, v0')
    a('s_waitcnt lgkmcnt(0)')
    d = 2
    regs = {'x': (4, X_BYTES), 'w0': (6, W_BYTES), 'w1': (8, W_BYTES), 'w2': (12, W_BYTES), 'w3': (14, W_BYTES), 'out': (16, X_BYTES), 'ws': (18, 0x1900000)}
    sr = 20
    for k in what:
        b, sz = regs[k]
        srd(a, sr, b, 0, sz)
        n = (sz + (64 << step_log2) - 1) // (64 << step_log2)
        for i in range(n):
            a(f's_mov_b32 s3, {i*(64 << step_log2)}')
            a(f'buffer_load_dword v{d}, v1, s[{sr}:{sr+3}], s3 offen'); d += 1
        sr += 4
    a('s_waitcnt vmcnt(0)')
    a('s_endpgm')
    add_first(base, name, a, 256, 64, 64, out)
def code(out):
    a = Asm(); name = 'gm_touch_kernel'; header(a, name)
    a('s_getpc_b64 s[4:5]')
    a.raw('gm_touch_pc:')
    a('s_sub_u32 s4, s4, gm_touch_pc - gm_rowfft_kernel')
    a('s_subb_u32 s5, s5, 0')
    a('s_mov_b32 s6, gm_touch_pc - gm_rowfft_kernel')
    a('s_mov_b32 s7, 0x00020000')
    a('v_lshlrev_b32 v1, 6, v0')
    for i in range(3):
        a(f's_mov_b32 s3, {i*4096}')
        a(f'buffer_load_dword v{2+i}, v1, s[4:7], s3 offen')
    a('s_waitcnt vmcnt(0)')
    a('s_endpgm')
    add_first(base, name, a, 256, 64, 16, out)
touch(16, ['x', 'w0', 'w1', 'w2', 'w3', 'out', 'ws'], 'w_all64k.s')
touch(21, ['x', 'w0', 'w1', 'w2', 'w3', 'out', 'ws'], 'w_all2m.s')
touch(16, ['ws', 'out'], 'w_ws64k.s')
code('w_code.s')
a = Asm(); header(a, 'gm_touch_kernel'); a('s_endpgm'); add_first(base, 'gm_touch_kernel', a, 256, 64, 8, 'w_empty.s')
```

```python
import sys
from asmlib import *
from gen import srd, header, descriptor
base = open(sys.argv[1]).read()
def add(s, name, a, grid, block, nv, out, first=True):
    line = f'; @launch kernel={name} grid=({grid},1,1) block=({block},1,1) lds=0\n'
    if first: j = s.index('; @launch')
    else: j = s.index('.amdgcn_target')
    s = s[:j] + line + s[j:]
    s = s.replace('.section .rodata,"a"\n', a.text() + '.section .rodata,"a"\n')
    s += descriptor(name, nv)
    open(out, 'w').write(s)
def spin(n, out, first=True):
    a = Asm(); name = 'gm_spin_kernel'; header(a, name)
    a(f's_mov_b32 s3, {n}')
    a.label('gm_spin_l')
    for i in range(16): a('v_add_u32 v1, v1, v2')
    a('s_sub_u32 s3, s3, 1')
    a('s_cmp_lg_u32 s3, 0')
    a('s_cbranch_scc1 gm_spin_l')
    a('s_endpgm')
    add(base, name, a, 256, 256, 8, out, first)
spin(150, 'sp_5f.s'); spin(300, 'sp_10f.s'); spin(600, 'sp_20f.s')
spin(300, 'sp_10l.s', False); spin(600, 'sp_20l.s', False)
```
